```python
import torch

def _softmax(x, axis=-1):
    return torch.softmax(x, dim=axis)
def _gelu(x):
    return torch.nn.functional.gelu(x, approximate="tanh")
def _silu(x):
    return torch.nn.functional.silu(x)
def _sigmoid(x):
    return torch.sigmoid(x)
def _layernorm(x, axis=-1, eps=1e-5):
    m = x.mean(dim=axis, keepdim=True)
    v = x.var(dim=axis, keepdim=True, unbiased=False)
    return (x - m) / torch.sqrt(v + eps)
def _scatter_add(tgt, idx, src, axis=0):
    return tgt.clone().index_add_(axis, idx, src)
def _segment_sum(src, seg, n):
    out = torch.zeros((n,) + src.shape[1:], dtype=src.dtype)
    return out.index_add_(0, seg, src)
def _pad(x, pw):
    flat = tuple(v for pair in reversed(pw) for v in pair)
    return torch.nn.functional.pad(x, flat)

kernel_name = 'interleave_layers__linear_kernel_hedgehog__glu_gated_bilinear__prompt'

def setup_inputs():

    _w = (lambda a: (lambda t: t.to(torch.bfloat16) if t.is_floating_point() else t)(torch.as_tensor(a)))
    def _A_setup():
        B, S, D, H = 1, 2048, 512, 32
        Dh = D // H
        return {
            "x": _w((lambda *s: torch.randn(*s, dtype=torch.bfloat16) * 0.05)(B, S, D)),
            "wqkv": _w((lambda *s: torch.randn(*s, dtype=torch.bfloat16) * 0.4)(D, 3 * D)),
            "w_phi": _w((lambda *s: torch.randn(*s, dtype=torch.bfloat16) * 0.4)(H, Dh, Dh) * (Dh ** -0.5)),
            "wo": _w((lambda *s: torch.randn(*s, dtype=torch.bfloat16) * 0.05)(D, D)),
        }
    _A_in = _A_setup()

    def _B_setup():
        B, S, D, F = 1, 2048, 512, 1792
        return {
            "x": _w((lambda *s: torch.randn(*s, dtype=torch.bfloat16) * 0.05)(B, S, D)),
            "w_gate": _w((lambda *s: torch.randn(*s, dtype=torch.bfloat16) * 1.6)(D, F) * (D ** -0.5)),
            "w_up": _w((lambda *s: torch.randn(*s, dtype=torch.bfloat16) * 1.6)(D, F) * (D ** -0.5)),
            "w_down": _w((lambda *s: torch.randn(*s, dtype=torch.bfloat16) * 1.6)(F, D) * (F ** -0.5)),
        }
    _B_in = _B_setup()

    return {
        "A_x": _A_in["x"],
        "A_wqkv": _A_in["wqkv"],
        "A_w_phi": _A_in["w_phi"],
        "A_wo": _A_in["wo"],
        "B_x": _B_in["x"],
        "B_w_gate": _B_in["w_gate"],
        "B_w_up": _B_in["w_up"],
        "B_w_down": _B_in["w_down"],
    }

def reference(A_x, A_wqkv, A_w_phi, A_wo, B_x, B_w_gate, B_w_up, B_w_down):
    def _A_ref(x, wqkv, w_phi, wo):
        B, S, D = x.shape
        H = 32; Dh = D // H
        qkv = (lambda x, *d: x.permute(*d))((x @ wqkv).reshape(B, S, 3, H, Dh), 2, 0, 3, 1, 4)
        q, k, v = qkv[0], qkv[1], qkv[2]
        pq = torch.einsum("bhsd,hdf->bhsf", q, w_phi)
        pk = torch.einsum("bhsd,hdf->bhsf", k, w_phi)
        phi_q = torch.concatenate([_softmax(pq, axis=-1), _softmax(-pq, axis=-1)], axis=-1)
        phi_k = torch.concatenate([_softmax(pk, axis=-1), _softmax(-pk, axis=-1)], axis=-1)
        kv = torch.einsum("bhsf,bhsd->bhfd", phi_k, v)
        z  = torch.einsum("bhsf->bhf", phi_k)
        num = torch.einsum("bhqf,bhfd->bhqd", phi_q, kv)
        den = torch.einsum("bhqf,bhf->bhq", phi_q, z)[..., None] + 1e-6
        o = num / den
        return (lambda x, *d: x.permute(*d))(o, 0, 2, 1, 3).reshape(B, S, D) @ wo

    def _B_ref(x, w_gate, w_up, w_down):
        g = torch.einsum("bsd,df->bsf", x, w_gate)
        u = torch.einsum("bsd,df->bsf", x, w_up)
        h = g * u
        return torch.einsum("bsf,fd->bsd", h, w_down)

    x = A_x
    x = x + _A_ref(_layernorm(x, axis=-1), A_wqkv, A_w_phi, A_wo)
    x = x + _B_ref(_layernorm(x, axis=-1), B_w_gate, B_w_up, B_w_down)
    x = x + _A_ref(_layernorm(x, axis=-1), A_wqkv, A_w_phi, A_wo)
    x = x + _B_ref(_layernorm(x, axis=-1), B_w_gate, B_w_up, B_w_down)
    return x
```

```python
import re

REG = re.compile(r'^(-|abs\()?([vas])(\d+|\[(\d+):(\d+)\])\)?$')

def regs_of(op):
    op = op.strip()
    if op in ('vcc', 'vcc_lo', 'vcc_hi'): return {('s', 'vcc')}
    if op in ('exec', 'exec_lo', 'exec_hi'): return {('s', 'exec')}
    if op == 'm0': return {('s', 'm0')}
    m = REG.match(op)
    if not m: return set()
    k = m.group(2)
    if m.group(4) is not None:
        return {(k, i) for i in range(int(m.group(4)), int(m.group(5)) + 1)}
    return {(k, int(m.group(3)))}

TRANS = ('v_exp_f32', 'v_log_f32', 'v_rcp_f32', 'v_rsq_f32', 'v_sqrt_f32', 'v_sin_f32', 'v_cos_f32')
RMW = ('v_fmac_f32', 'v_dot2c_f32_bf16', 'v_pk_fmac')

class Ins:
    def __init__(self, text, tag=None):
        self.text = text; self.tag = tag
        t = text.split(';')[0].strip()
        self.label = t.endswith(':')
        self.directive = t.startswith('.')
        parts = t.split(None, 1)
        self.op = parts[0] if parts else ''
        rest = parts[1] if len(parts) > 1 else ''
        ops = [x.strip() for x in rest.split(',')] if rest else []
        mods = ''
        if ops:
            sp = ops[-1].split(None, 1)
            ops[-1] = sp[0] if sp else ''
            mods = sp[1] if len(sp) > 1 else ''
        self.ops = ops; self.mods = mods
        op = self.op
        self.mfma = op.startswith('v_mfma')
        self.valu = op.startswith('v_') and not self.mfma
        self.vmem = op.startswith('buffer_') or op.startswith('global_')
        self.ds = op.startswith('ds_')
        self.smem = op.startswith('s_load') or op.startswith('s_memtime') or op.startswith('s_memrealtime')
        self.trans = any(op.startswith(x) for x in TRANS)
        self.lds_dma = self.vmem and re.search(r'\blds\b', mods) is not None
        R = [regs_of(o) for o in ops]
        U = lambda l: set().union(*l) if l else set()
        self.w = set(); self.r = set(); self.mem_dst = set(); self.store_data = set()
        self.srcc = set(); self.srcab = set()
        if self.label or self.directive or not op:
            pass
        elif self.mfma:
            self.w = R[0]; self.r = U(R[1:]); self.srcab = R[1] | R[2]; self.srcc = R[3]
            self.passes = 8 if '32x32x16' in op else 4
        elif self.valu:
            if op.startswith('v_permlane') and 'swap' in op:
                self.w = R[0] | R[1]; self.r = R[0] | R[1]
            elif op.startswith('v_cmp'):
                self.w = R[0]; self.r = U(R[1:])
            elif op.startswith(('v_add_co', 'v_sub_co', 'v_addc_co', 'v_subb_co')):
                self.w = R[0] | R[1]; self.r = U(R[2:])
            else:
                self.w = R[0]; self.r = U(R[1:])
                if any(op.startswith(x) for x in RMW): self.r |= R[0]
                if op.startswith('v_cndmask') and len(ops) == 3: self.r |= {('s', 'vcc')}
        elif self.vmem:
            if self.lds_dma:
                self.r = U(R) | {('s', 'm0')}
            elif '_load' in op:
                self.mem_dst = R[0]; self.r = U(R[1:])
                if 'd16' in op: self.r |= R[0]
            else:
                self.r = U(R); self.store_data = R[0]
                if 'atomic' in op and re.search(r'\bsc0\b', mods): self.mem_dst = R[0]
        elif self.ds:
            if op.startswith(('ds_read', 'ds_bpermute', 'ds_permute', 'ds_swizzle')):
                self.mem_dst = R[0]; self.r = U(R[1:])
            else:
                self.r = U(R)
        elif self.smem:
            self.mem_dst = R[0]; self.r = U(R[1:])
        elif op.startswith('s_'):
            if op.startswith(('s_cmp', 's_cbranch', 's_branch', 's_waitcnt', 's_barrier', 's_nop', 's_endpgm', 's_sleep', 's_setprio', 's_setpc', 's_bitcmp')):
                self.r = U(R)
                if 'vcc' in op: self.r |= {('s', 'vcc')}
                if 'exec' in op: self.r |= {('s', 'exec')}
            else:
                self.w = R[0]; self.r = U(R[1:])
                if 'saveexec' in op: self.w |= {('s', 'exec')}; self.r |= {('s', 'exec')}
        self.wide_store = self.vmem and not self.lds_dma and ('_store_dwordx4' in op or '_store_dwordx3' in op)

class Asm:
    def __init__(self):
        self.items = []
    def __call__(self, text, tag=None):
        for line in text.split('\n'):
            line = line.strip()
            if line: self.items.append(Ins(line, tag))
    def wait_tag(self, tag):
        self.items.append(('wait_tag', tag))
    def drain(self, vm=False, lgkm=False):
        self.items.append(('drain', vm, lgkm))
    def extend(self, lst):
        for x in lst:
            if isinstance(x, str): self(x)
            elif isinstance(x, tuple) and x and x[0] in ('wait_tag', 'drain'): self.items.append(x)
            elif isinstance(x, tuple): self(x[0], x[1])
            else: self.items.append(x)

    def finish(self):
        out = []
        vmq = []; lgq = []
        hist = []
        stats = {'nop': 0, 'wait': 0}
        def emit(text):
            out.append('    ' + text)
        def push(ins):
            hist.append(ins)
            if len(hist) > 24: hist.pop(0)
        def do_wait(vm=None, lg=None):
            nonlocal vmq, lgq
            parts = []
            if vm is not None and vm < len(vmq):
                assert vm <= 63
                parts.append(f'vmcnt({vm})'); vmq = vmq[len(vmq) - vm:] if vm else []
            if lg is not None and lg < len(lgq):
                if any(e[1] for e in lgq): lg = 0
                parts.append(f'lgkmcnt({lg})'); lgq = lgq[len(lgq) - lg:] if lg else []
            if parts:
                t = 's_waitcnt ' + ' '.join(parts); emit(t); push(Ins(t)); stats['wait'] += 1
        def need(q, regs):
            for i in range(len(q) - 1, -1, -1):
                if q[i][0] & regs: return len(q) - 1 - i
            return None
        for it in self.items:
            if isinstance(it, tuple):
                if it[0] == 'wait_tag':
                    n = None
                    for i in range(len(vmq) - 1, -1, -1):
                        if vmq[i][2] == it[1]: n = len(vmq) - 1 - i; break
                    do_wait(vm=n)
                else:
                    do_wait(vm=0 if it[1] else None, lg=0 if it[2] else None)
                continue
            ins = it
            if ins.label or ins.directive:
                out.append(ins.text); continue
            if ins.op == 's_waitcnt':
                m = re.search(r'vmcnt\((\d+)\)', ins.text);
                if m: n = int(m.group(1)); vmq = vmq[len(vmq) - n:] if n < len(vmq) and n else ([] if n == 0 else vmq)
                m = re.search(r'lgkmcnt\((\d+)\)', ins.text)
                if m: n = int(m.group(1)); lgq = lgq[len(lgq) - n:] if n < len(lgq) and n else ([] if n == 0 else lgq)
                emit(ins.text); push(ins); continue
            touched = ins.r | ins.w | ins.mem_dst
            vm = need(vmq, touched); lg = need(lgq, touched)
            if ins.vmem and len(vmq) >= 62: vm = min(vm, 61) if vm is not None else 61
            if (ins.ds or ins.smem) and len(lgq) >= 14: lg = min(lg, 13) if lg is not None else 13
            do_wait(vm, lg)
            req = 0
            for d, p in enumerate(reversed(hist)):
                n = 0
                vw = {x for x in p.w if x[0] in 'va'}
                sw = {x for x in p.w if x[0] == 's'}
                if p.mfma:
                    big = 12 if p.passes == 8 else 8
                    if ins.mfma:
                        if vw & ins.srcab: n = max(n, big)
                        if vw & ins.srcc and not (vw == ins.srcc and p.passes == ins.passes): n = max(n, big - 2)
                        if vw & ins.w and not (vw & ins.srcc): n = max(n, big)
                    elif (ins.valu or ins.vmem or ins.ds) and (vw & touched): n = max(n, big)
                    if ins.valu and (p.srcc & ins.w): n = max(n, 7 if p.passes == 8 else 3)
                    if (ins.vmem or ins.ds) and (p.srcc & ins.mem_dst): n = max(n, 7 if p.passes == 8 else 3)
                elif p.valu:
                    if ins.mfma and (vw & ins.r): n = max(n, 2)
                    if ins.mfma and ('s', 'exec') in sw: n = max(n, 4)
                    if ins.op.startswith('v_permlane') and (vw & ins.r): n = max(n, 2)
                    if 'dpp' in ins.mods or 'row_' in ins.mods or 'quad_perm' in ins.mods:
                        if vw & ins.r: n = max(n, 2)
                    if ins.op.startswith(('v_readlane', 'v_readfirstlane')) and (vw & ins.r): n = max(n, 1)
                    if p.trans and ins.valu and not ins.trans and (vw & ins.r): n = max(n, 1)
                    if p.trans and ins.trans and (vw & ins.r): n = max(n, 1)
                    if ins.vmem and (sw & ins.r): n = max(n, 5)
                    if ins.valu and (sw & ins.r): n = max(n, 2)
                    if ins.op.startswith('s_') and (sw & ins.r): n = max(n, 1)
                elif p.wide_store:
                    if p.store_data & (ins.w | ins.mem_dst): n = max(n, 2)
                elif ('s', 'm0') in sw:
                    if ins.lds_dma: n = max(n, 1)
                req = max(req, n - d)
            while req > 0:
                k = min(req, 16)
                emit(f's_nop {k-1}'); stats['nop'] += k
                for _ in range(k): push(Ins('s_nop 0'))
                req -= k
            emit(ins.text)
            if ins.op == 's_nop':
                for _ in range(int(ins.ops[0]) + 1): push(Ins('s_nop 0'))
            else:
                push(ins)
            if ins.vmem: vmq.append((ins.mem_dst, False, ins.tag))
            if ins.ds: lgq.append((ins.mem_dst, False, ins.tag))
            if ins.smem:
                lgq.append((ins.mem_dst, True, ins.tag))
        self.stats = stats
        return '\n'.join(out) + '\n'

def weave(main, fill, start=0, every=1, per=1):
    out = []; fi = 0
    for i, m in enumerate(main):
        out.extend(m if isinstance(m, list) else [m])
        if i >= start and (i - start) % every == 0:
            for _ in range(per):
                if fi < len(fill):
                    f = fill[fi]; out.extend(f if isinstance(f, list) else [f]); fi += 1
    for f in fill[fi:]:
        out.extend(f if isinstance(f, list) else [f])
    return out
```

```python
W1 = 0x0
W2 = 0x180000
W3 = 0x200000
W4 = 0x580000
ZR = 0x740000
KVT = ZR
ZT = ZR + 0x20000
KVD = ZR + 0x22000
X1C = ZR + 0x32000
X2C = ZR + 0x36000
HC = ZR + 0x38000
ZR_KB = 288
ST = 0x790000
X = 0x890000
PQ = 0x1090000
H = 0x1890000
WS_END = 0x2690000
DBG = 0x2700000
```

```python
from asmlib import Asm, weave
from layout import *
from prep import srd, onehot

LB = 0x18000
TIMEOUT = 1 << 16
M32 = 'v_mfma_f32_32x32x16_bf16'
M16 = 'v_mfma_f32_16x16x32_bf16'
vL16, vLA, vLC, vL4 = 1, 2, 3, 4
XR = 128
SEL0, SEL1 = 248, 252
aPQST, aKVW, aZW, aTID4, aRSW, aRSV, aBP, aZR, aXE2, aST2, aST4, aOUT, aKVP, aOWN, aC4 = range(232, 247)
sW, sR, sJ, sTB = 3, 16, 17, 18
sXB, sSTB, sW1, sW3, sW2, sW4, sL4K, sL16K = 20, 21, 22, 23, 24, 25, 26, 27
sTB2, sBLK2, sTB4, sBLK4, sTBA, sTBB = 28, 29, 30, 31, 32, 33
sD, sTO, sT0, sT1, sT2, sT3 = 40, 41, 42, 43, 46, 47

def v(a, n=4): return f'v[{a}:{a+n-1}]'
def ag(a, n=4): return f'a[{a}:{a+n-1}]'

class Gen:
    def __init__(self, name, cfg):
        self.a = Asm(); self.name = name; self.cfg = cfg; self.nl = 0; self.nstamp = 0
    def label(self, s):
        self.nl += 1; return f'L_{s}_{self.nl}'
    def stamp(self):
        if not self.cfg.get('diag'): return
        a = self.a; k = self.nstamp; self.nstamp += 1
        a(f's_memtime s[44:45]\ns_waitcnt lgkmcnt(0)\ns_mov_b32 s{60+k}, s44')
    def lds(self, off):
        base = (vL16, vLA, vLC)[off >> 16]
        return f'v{base} offset:{off & 0xffff}'
    def dma4(self, sl, lds_off, sg, g_off, tag):
        first = [f's_add_u32 m0, s{sl}, {lds_off}', f's_add_u32 s{sD}, s{sg}, {g_off}']
        g = []
        for k in range(4):
            ld = (f'buffer_load_dwordx4 v{vL16}, s[8:11], s{sD} offen offset:{1024*k} lds', tag)
            g.append((first if k == 0 else []) + [ld])
        return g
    def ld(self, dst, sbase, off, st, tag=None, va=vL16, sc=True):
        hi, lo = off & ~0xfff, off & 0xfff
        out = []
        if hi: out.append(f's_add_u32 s{st}, s{sbase}, {hi}'); s = st
        else: s = sbase
        out.append((f'buffer_load_dwordx4 {dst}, v{va}, s[8:11], s{s} offen offset:{lo}' + (' sc1' if sc else ''), tag))
        return out
    def poll(self, va, so, target):
        a = self.a; L = self.label('poll'); D = self.label('done')
        a(f's_mov_b32 s{sTO}, {TIMEOUT}\n{L}:\nbuffer_load_dword v6, v{va}, s[8:11], s{so} offen sc1\ns_waitcnt vmcnt(0)')
        a(f'v_cmp_ne_u32 vcc, {target}, v6\ns_cbranch_vccz {D}\ns_sub_u32 s{sTO}, s{sTO}, 1\ns_cbranch_scc0 {L}\n{D}:')
    def arrive(self, so):
        self.a(f'v_mov_b32 v6, 0\nv_mov_b32 v7, 1\ns_mov_b64 exec, 1\nbuffer_atomic_add v7, v6, s[8:11], s{so} offen sc1\ns_mov_b64 exec, -1')

    def init(self):
        a = self.a; n = self.name
        a(f'.globl {n}\n.p2align 8\n.type {n},@function\n{n}:')
        a('s_cmp_lt_u32 s2, 256\ns_cbranch_scc1 L_main_go\ns_endpgm\nL_main_go:')
        a('s_load_dwordx2 s[4:5], s[0:1], 80\ns_load_dwordx2 s[6:7], s[0:1], 64')
        if self.cfg.get('diag'): a('s_memrealtime s[56:57]')
        a('v_lshrrev_b32 v5, 6, v0\nv_and_b32 v6, 63, v0\nv_lshlrev_b32 v1, 4, v6')
        a(f'v_readfirstlane_b32 s{sW}, v5')
        if self.cfg.get('map', 'B') == 'A':
            a(f's_and_b32 s{sT0}, s2, 7\ns_lshr_b32 s{sT1}, s2, 3\ns_lshr_b32 s{sR}, s{sT1}, 4\ns_lshl_b32 s{sT0}, s{sT0}, 1\ns_add_u32 s{sR}, s{sR}, s{sT0}\ns_and_b32 s{sJ}, s{sT1}, 15')
        else:
            a(f's_and_b32 s{sT0}, s2, 7\ns_lshr_b32 s{sT1}, s2, 3\ns_lshr_b32 s{sR}, s{sT1}, 3\ns_lshr_b32 s{sT2}, s{sT0}, 1\ns_lshl_b32 s{sT2}, s{sT2}, 2\ns_add_u32 s{sR}, s{sR}, s{sT2}')
            a(f's_and_b32 s{sJ}, s{sT1}, 7\ns_and_b32 s{sT0}, s{sT0}, 1\ns_lshl_b32 s{sT0}, s{sT0}, 3\ns_add_u32 s{sJ}, s{sJ}, s{sT0}')
        a(f's_lshl_b32 s{sL4K}, s{sW}, 12\ns_lshl_b32 s{sL16K}, s{sW}, 14')
        a(f's_mul_i32 s{sW1}, s{sJ}, {96*1024}\ns_add_u32 s{sW1}, s{sW1}, s{sL4K}')
        a(f's_lshl_b32 s{sTB}, s{sR}, 2\ns_add_u32 s{sTB}, s{sTB}, s{sW}\ns_lshl_b32 s{sXB}, s{sTB}, 15\ns_lshl_b32 s{sSTB}, s{sTB}, 12')
        a('s_waitcnt lgkmcnt(0)')
        srd(a, 8, 4, WS_END if not self.cfg.get('diag') else DBG + 0x40000)
    def init2(self):
        a = self.a
        srd(a, 12, 6, 2048 * 512 * 2)
        a(f's_mul_i32 s{sW3}, s{sJ}, {224*1024}\ns_add_u32 s{sW3}, s{sW3}, {W3}')
        a(f's_and_b32 s{sT0}, s{sJ}, 3\ns_lshl_b32 s{sT0}, s{sT0}, 2\ns_add_u32 s{sBLK2}, s{sT0}, s{sW}\ns_lshl_b32 s{sW2}, s{sBLK2}, 15\ns_add_u32 s{sW2}, s{sW2}, {W2}')
        a(f's_lshr_b32 s{sT0}, s{sJ}, 2\ns_lshl_b32 s{sTB2}, s{sR}, 2\ns_add_u32 s{sTB2}, s{sTB2}, s{sT0}')
        a(f's_and_b32 s{sT0}, s{sJ}, 7\ns_lshl_b32 s{sT1}, s{sT0}, 2\ns_add_u32 s{sT1}, s{sT1}, s{sW}\ns_mul_i32 s{sW4}, s{sT1}, {56*1024}\ns_add_u32 s{sW4}, s{sW4}, {W4}')
        a(f's_lshl_b32 s{sT0}, s{sT0}, 1\ns_and_b32 s{sT1}, s{sW}, 1\ns_add_u32 s{sBLK4}, s{sT0}, s{sT1}')
        a(f's_lshr_b32 s{sT0}, s{sJ}, 3\ns_lshl_b32 s{sT0}, s{sT0}, 1\ns_lshl_b32 s{sT1}, s{sR}, 2\ns_add_u32 s{sT0}, s{sT0}, s{sT1}')
        a(f's_lshr_b32 s{sT1}, s{sW}, 1\ns_add_u32 s{sTB4}, s{sT0}, s{sT1}\ns_xor_b32 s{sT1}, s{sT1}, 1\ns_add_u32 s{sTBB}, s{sT0}, s{sT1}\ns_mov_b32 s{sTBA}, s{sTB4}')
        a(f'v_add_u32 v{vLA}, 0x10000, v1\nv_add_u32 v{vLC}, 0x20000, v1\nv_lshlrev_b32 v{vL4}, 2, v6')
        a('v_and_b32 v7, 31, v6\nv_lshrrev_b32 v8, 5, v6\nv_bfe_u32 v9, v6, 2, 1\nv_bfe_u32 v10, v6, 3, 1\nv_bfe_u32 v11, v6, 4, 1\nv_and_b32 v12, 3, v6')
        a('v_and_b32 v13, 15, v6\nv_lshrrev_b32 v14, 4, v6')
        a(f's_add_u32 s{sT0}, s{sL16K}, {LB}')
        def park(dst): a(f'v_accvgpr_write_b32 a{dst}, v15')
        a('v_lshlrev_b32 v15, 4, v13\nv_lshl_add_u32 v15, v11, 10, v15\nv_lshl_add_u32 v15, v8, 11, v15'); park(aPQST)
        a(f'v_lshlrev_b32 v15, 4, v13\nv_lshl_add_u32 v15, v8, 8, v15\nv_lshl_add_u32 v15, v11, 11, v15\nv_add_u32 v15, s{sT0}, v15'); park(aKVW)
        a(f'v_lshl_add_u32 v15, v10, 2, v12\nv_lshl_add_u32 v15, v9, 3, v15\nv_lshl_add_u32 v15, v8, 4, v15\nv_lshl_add_u32 v15, v11, 5, v15\nv_lshlrev_b32 v15, 2, v15\nv_add_u32 v15, s{sT0}, v15'); park(aZW)
        a('v_lshlrev_b32 v15, 2, v0'); park(aTID4)
        a(f'v_lshl_add_u32 v15, v13, 1, v8\nv_lshlrev_b32 v15, 2, v15\nv_add_u32 v15, s{sT0}, v15'); park(aRSW)
        a(f'v_lshlrev_b32 v15, 4, v8\nv_add_u32 v15, s{sT0}, v15'); park(aRSV)
        a('v_and_b32 v15, 1, v6\nv_lshlrev_b32 v15, 5, v15\nv_lshrrev_b32 v16, 1, v7\nv_add_u32 v15, v15, v16\nv_lshlrev_b32 v15, 2, v15'); park(aBP)
        a(f'v_lshlrev_b32 v15, 4, v14\nv_add_u32 v15, s{sT0}, v15'); park(aZR)
        a('v_lshlrev_b32 v15, 4, v13\nv_lshl_add_u32 v15, v14, 9, v15'); park(aXE2)
        a('v_lshl_add_u32 v15, v8, 4, v13\nv_lshl_add_u32 v15, v15, 1, v11\nv_lshlrev_b32 v15, 2, v15'); park(aST2)
        a('v_lshl_add_u32 v15, v7, 1, v8\nv_lshlrev_b32 v15, 2, v15'); park(aST4)
        a('v_lshlrev_b32 v15, 10, v7\nv_lshl_add_u32 v15, v8, 4, v15'); park(aOUT)
        a('v_lshlrev_b32 v15, 7, v12'); park(aKVP)
        a(f'v_add_u32 v15, s{sT0}, v1'); park(aOWN)
        a('v_mov_b32 v15, v11'); park(aC4)
        a('v_lshl_add_u32 v16, v10, 2, v12\nv_cmp_eq_u32 vcc, v11, v8\nv_cndmask_b32 v17, 0, 1, vcc\nv_and_b32 v18, v17, v9\nv_sub_u32 v17, v17, v18')
        onehot(a, 20, 16, 17, 28); onehot(a, 24, 16, 18, 28)
        for q in range(8): a(f'v_accvgpr_write_b32 a{SEL0+q}, v{20+q}')

    def stat_loads(self, xi):
        out = [f's_add_u32 s{sT0}, s{sSTB}, {ST + xi*0x40000}']
        for i in range(4): out.append(f'buffer_load_dwordx4 {v(96+4*i)}, v{vL16}, s[8:11], s{sT0} offen offset:{1024*i} sc1')
        return out
    def rstd(self):
        o = []
        for k in range(4): o += [f'v_add_f32 v{96+k}, v{96+k}, v{100+k}', f'v_add_f32 v{104+k}, v{104+k}, v{108+k}']
        for k in range(4): o += [f'v_add_f32 v{96+k}, v{96+k}, v{104+k}']
        o += ['v_permlane32_swap_b32 v96, v98', 'v_permlane32_swap_b32 v97, v99', 'v_add_f32 v96, v96, v98', 'v_add_f32 v97, v97, v99',
              'v_permlane16_swap_b32 v96, v97', 'v_add_f32 v96, v96, v97', 'v_mov_b32 v97, v96', 'v_permlane16_swap_b32 v96, v97',
              'v_mul_f32 v96, 0x3b000000, v96', 'v_mul_f32 v97, 0x3b000000, v97', 'v_fma_f32 v97, -v96, v96, v97',
              'v_max_f32 v97, 0, v97', 'v_add_f32 v97, 0x3727c5ac, v97', 'v_rsq_f32 v96, v97']
        return o
    def xload(self, xi, s):
        return self.ld(v(XR + 4 * s), sT3, 1024 * s, sT1)
    def features(self, p, en, dst, t):
        o = []
        mx, mn, s0, s1, s2, s3 = range(t, t + 6)
        o += [f'v_max3_f32 v{mx}, v{p}, v{p+1}, v{p+2}', f'v_min3_f32 v{mn}, v{p}, v{p+1}, v{p+2}']
        for k in range(3, 15, 2):
            o += [f'v_max3_f32 v{mx}, v{mx}, v{p+k}, v{p+k+1}', f'v_min3_f32 v{mn}, v{mn}, v{p+k}, v{p+k+1}']
        o += [f'v_max_f32 v{mx}, v{mx}, v{p+15}', f'v_min_f32 v{mn}, v{mn}, v{p+15}']
        o += [f'v_mul_f32 v{mx}, -v5, v{mx}', f'v_mul_f32 v{mn}, v5, v{mn}']
        for k in range(16):
            o += [f'v_fma_f32 v{en+k}, -v5, v{p+k}, v{mn}', f'v_fma_f32 v{p+k}, v5, v{p+k}, v{mx}']
            if k: o += [f'v_exp_f32 v{en+k-1}, v{en+k-1}', f'v_exp_f32 v{p+k-1}, v{p+k-1}']
        o += [f'v_exp_f32 v{en+15}, v{en+15}', f'v_exp_f32 v{p+15}, v{p+15}']
        o += [f'v_add_f32 v{s0}, v{p}, v{p+1}', f'v_add_f32 v{s1}, v{en}, v{en+1}', f'v_add_f32 v{s2}, v{p+2}, v{p+3}', f'v_add_f32 v{s3}, v{en+2}, v{en+3}']
        for k in range(4, 16, 2):
            o += [f'v_add_f32 v{s0}, v{s0}, v{p+k}', f'v_add_f32 v{s1}, v{s1}, v{en+k}', f'v_add_f32 v{s2}, v{s2}, v{p+k+1}', f'v_add_f32 v{s3}, v{s3}, v{en+k+1}']
        o += [f'v_add_f32 v{s0}, v{s0}, v{s2}', f'v_add_f32 v{s1}, v{s1}, v{s3}', f'v_rcp_f32 v{s0}, v{s0}', f'v_rcp_f32 v{s1}, v{s1}']
        head = len(o)
        for (src, sc, d) in ((p, s0, dst), (en, s1, dst + 8)):
            for q in range(8):
                o += [f'v_mul_f32 v{src+2*q}, v{src+2*q}, v{sc}', f'v_mul_f32 v{src+2*q+1}, v{src+2*q+1}, v{sc}', f'v_cvt_pk_bf16_f32 v{d+q}, v{src+2*q}, v{src+2*q+1}']
        return o, head

    def p1(self, l):
        a = self.a; xi = 2 * l; NX0 = 14
        aK, aV, aQ, WB = 16, 32, 48, 64
        if l == 0:
            for b in range(4): a.extend(sum(self.dma4(sL4K, 16384 * b, sW1, W1 + 16384 * b, 'w1kv'), []))
        else:
            a(f's_lshl_b32 s{sT0}, s{sTB}, 7\ns_add_u32 s{sT0}, s{sT0}, {X2C}\nv_mov_b32 v7, 0')
            self.poll(7, sT0, 16)
        self.stamp()
        a.extend(self.stat_loads(xi))
        a(f's_add_u32 s{sT3}, s{sXB}, {X + xi*0x200000}')
        for s in range(NX0): a.extend(self.xload(xi, s))
        if l == 0: self.init2()
        a.extend([f'v_accvgpr_read_b32 v7, a{aRSW}', f'v_accvgpr_read_b32 v8, a{aRSV}', f'v_accvgpr_read_b32 v9, a{aBP}'] + self.rstd())
        a(f'ds_write_b32 v7, v96 offset:{0x3000}\nds_bpermute_b32 v5, v9, v96')
        for q in range(4): a(f'ds_read_b128 {v(112+4*q)}, v8 offset:{0x3000 + 32*q}')
        if l == 0: a.wait_tag('w1kv')
        a('s_barrier')
        a('v_mul_f32 v5, 0x3fb8aa3b, v5')
        rd = lambda s: [f'ds_read_b128 {v(WB + 8*(s%4))}, {self.lds(2048*s)}', f'ds_read_b128 {v(WB + 8*(s%4) + 4)}, {self.lds(2048*s + 1024)}']
        rq = lambda s: f'ds_read_b128 {v(WB + 4*(s%8))}, {self.lds(0x10000 + 1024*s)}'
        for s in range(3): a.extend(rd(s))
        extra = []
        if l == 0:
            for b in range(2): extra += self.dma4(sL4K, 0x10000 + 16384 * b, sW1, W1 + 0x10000 + 16384 * b, 'w1q')
        for s in range(32):
            if s + NX0 < 32: a.extend(self.xload(xi, s + NX0))
            elif extra: a.extend(extra.pop(0))
            if s + 3 < 32: a.extend(rd(s + 3))
            c = lambda acc: v(acc, 16) if s else '0'
            a(f'{M32} {v(aK,16)}, {v(WB + 8*(s%4))}, {v(XR+4*s)}, {c(aK)}')
            a(f'{M32} {v(aV,16)}, {v(XR+4*s)}, {v(WB + 8*(s%4) + 4)}, {c(aV)}')
        assert not extra
        if l == 0:
            a.wait_tag('w1q'); a('s_barrier')
        self.stamp()
        for s in range(6): a(rq(s))
        fill = []
        kf, _ = self.features(aK, 96, 112, 8)
        vs = []
        for q in range(8):
            vs += [f'v_mul_f32 v{aV+2*q}, v{aV+2*q}, v{112+2*q}', f'v_mul_f32 v{aV+2*q+1}, v{aV+2*q+1}, v{112+2*q+1}', f'v_cvt_pk_bf16_f32 v{aV+q}, v{aV+2*q}, v{aV+2*q+1}']
        fill = kf[:18] + vs + kf[18:]
        w2l = [self.ld(v(XR + 4 * s), sW2, 1024 * s, sT1, sc=False) for s in range(32)]
        main = []
        for s in range(32):
            m = [f'{M32} {v(aQ,16)}, {v(WB + 4*(s%8))}, {v(XR+4*s)}, {v(aQ,16) if s else "0"}']
            if s + 6 < 32: m.append(rq(s + 6))
            if s % 2 == 1: m += w2l[s // 2]
            main.append(m)
        a.extend(weave(main, fill, start=1, per=6))
        self.stamp()
        qf, qhead = self.features(aQ, 80, 112, 10)
        a(f'{M32} {v(16,16)}, {v(112)}, {ag(SEL0)}, 0\n{M32} {v(96,16)}, {v(120)}, {ag(SEL0)}, 0')
        a(f'{M32} {v(16,16)}, {v(116)}, {ag(SEL1)}, {v(16,16)}\n{M32} {v(96,16)}, {v(124)}, {ag(SEL1)}, {v(96,16)}')
        a.extend(qf[:18]); qi = 18
        for q in range(8): a(f'v_cvt_pk_bf16_f32 v{112+q}, v{16+2*q}, v{17+2*q}')
        for q in range(8): a(f'v_cvt_pk_bf16_f32 v{120+q}, v{96+2*q}, v{97+2*q}')
        a('v_add_f32 v8, v16, v17\nv_add_f32 v9, v96, v97')
        for k in range(2, 16): a(f'v_add_f32 v8, v8, v{16+k}\nv_add_f32 v9, v9, v{96+k}')
        a(f'{M32} {v(16,16)}, {v(112)}, {v(32)}, 0\n{M32} {v(96,16)}, {v(120)}, {v(32)}, 0')
        a(f'{M32} {v(16,16)}, {v(116)}, {v(36)}, {v(16,16)}\n{M32} {v(96,16)}, {v(124)}, {v(36)}, {v(96,16)}')
        a(f'v_permlane32_swap_b32 v8, v9\nv_accvgpr_read_b32 v6, a{aZW}\nv_accvgpr_read_b32 v7, a{aC4}\nv_add_f32 v8, v8, v9\nv_cmp_ne_u32 vcc, 0, v7')
        a(f'ds_write_b32 v6, v8 offset:4096\nv_accvgpr_read_b32 v7, a{aKVW}')
        a.extend(qf[qi:qi + 12]); qi += 12
        for i in range(8): a(f'v_cndmask_b32 v{64+i}, v{16+i}, v{24+i}, vcc')
        a(f'ds_write_b128 v7, {v(64)}\nds_write_b128 v7, {v(68)} offset:1024')
        for i in range(8): a(f'v_cndmask_b32 v{72+i}, v{96+i}, v{104+i}, vcc')
        a(f'ds_write_b128 v7, {v(72)} offset:512\nds_write_b128 v7, {v(76)} offset:1536')
        a(f'v_accvgpr_read_b32 v6, a{aTID4}\ns_lshl_b32 s{sT0}, s{sW}, 6')
        a(f'v_add_u32 v7, {LB}, v6\nv_add_u32 v9, s{sT0}, v{vL4}\nv_add_u32 v8, {LB + 4096}, v9')
        a.drain(lgkm=True)
        a('s_barrier')
        for q in range(4):
            for w in range(4): a(f'ds_read_b32 v{16+4*q+w}, v7 offset:{16384*w + 1024*q}')
        for w in range(4): a(f'ds_read_b32 v{32+w}, v8 offset:{16384*w}')
        a(f's_lshl_b32 s{sT0}, s{sJ}, 12\ns_add_u32 s{sT0}, s{sT0}, {KVT + l*0x10000}\ns_lshl_b32 s{sT2}, s{sJ}, 8\ns_add_u32 s{sT2}, s{sT2}, {ZT + l*0x1000}')
        a.extend(qf[qi:qi + 8]); qi += 8
        for q in range(4):
            b = 16 + 4 * q
            a(f'v_add_f32 v{b}, v{b}, v{b+1}\nv_add_f32 v{b+2}, v{b+2}, v{b+3}\nv_add_f32 v{b}, v{b}, v{b+2}')
            a(f'buffer_atomic_add_f32 v{b}, v6, s[8:11], s{sT0} offen offset:{1024*q}', 'pub')
        a('v_add_f32 v32, v32, v33\nv_add_f32 v34, v34, v35\nv_add_f32 v32, v32, v34')
        a('s_mov_b64 exec, 0xffff')
        a(f'buffer_atomic_add_f32 v32, v9, s[8:11], s{sT2} offen', 'pub')
        a('s_mov_b64 exec, -1')
        self.stamp()
        rest = qf[qi:]
        a.extend(weave([[x] for x in rest], w2l[16:], start=4, every=7))
        a(f'v_accvgpr_read_b32 v6, a{aPQST}\ns_lshl_b32 s{sT0}, s{sTB}, 16\ns_lshl_b32 s{sT2}, s{sJ}, 12\ns_add_u32 s{sT0}, s{sT0}, s{sT2}\ns_add_u32 s{sT0}, s{sT0}, {PQ + l*0x400000}')
        for g in range(4): a(f'buffer_store_dwordx4 {v(112+4*g)}, v6, s[8:11], s{sT0} offen offset:{256*g} sc1', 'pub')
        a(f's_add_u32 s{sT2}, s{sW3}, s{sL4K}')
        for b in range(2): a.extend(sum(self.dma4(sL4K, 16384 * b, sT2, 16384 * b, 'w3a'), []))
        a.wait_tag('pub')
        a('s_barrier')
        a(f's_lshl_b32 s{sT0}, s{sW}, 13\ns_lshl_b32 s{sT1}, s{sJ}, 7\ns_add_u32 s{sT0}, s{sT0}, s{sT1}\ns_add_u32 s{sT0}, s{sT0}, {KVD + l*0x8000}')
        a(f'v_lshlrev_b32 v6, 7, v{vL16}\nv_mov_b32 v7, 1\ns_mov_b64 exec, 15')
        a(f'buffer_atomic_add v7, v6, s[8:11], s{sT0} offen sc1\ns_mov_b64 exec, -1')
        self.stamp()
        for b in range(2, 4): a.extend(sum(self.dma4(sL4K, 16384 * b, sT2, 16384 * b, 'w3a'), []))

    def reduce(self, src_fn, owner_fn, own_read):
        a = self.a
        for q in range(1, 4):
            owner_fn(q)
            a(f's_lshl_b32 s{sT0}, s{sT0}, 14\ns_add_u32 s{sT0}, s{sT0}, {LB + (q-1)*4096}\nv_add_u32 v6, s{sT0}, v{vL16}')
            for u in range(4): a(f'ds_write_b128 v6, {src_fn(q, u)} offset:{1024*u}')
        own_read()
        a(f'v_accvgpr_read_b32 v6, a{aOWN}')
        a.drain(lgkm=True)
        a('s_barrier')
        for q in range(3):
            for u in range(4): a(f'ds_read_b128 {v(80 + 16*q + 4*u)}, v6 offset:{4096*q + 1024*u}')
    def p2(self, l):
        a = self.a; xi = 2 * l
        a(f's_lshl_b32 s{sT0}, s{sR}, 11\ns_lshl_b32 s{sT1}, s{sW}, 9\ns_add_u32 s{sT0}, s{sT0}, s{sT1}\ns_add_u32 s{sT0}, s{sT0}, {KVD + l*0x8000}')
        a(f'v_accvgpr_read_b32 v7, a{aKVP}')
        a(f's_lshl_b32 s{sT2}, s{sW}, 14\ns_add_u32 s{sT2}, s{sT2}, {KVT + l*0x10000}')
        a(f's_lshl_b32 s{sT3}, s{sTB2}, 16\ns_add_u32 s{sT3}, s{sT3}, s{sL16K}\ns_add_u32 s{sT3}, s{sT3}, {PQ + l*0x400000}')
        self.poll(7, sT0, 16)
        self.stamp()
        a(f's_lshl_b32 s{sT0}, s{sW}, 10\ns_add_u32 s{sT0}, s{sT0}, {ZT + l*0x1000}')
        a(f'buffer_load_dwordx4 {v(96)}, v{vL16}, s[8:11], s{sT0} offen sc1')
        def loads(ks):
            o = []
            for k in range(4): o.append(self.ld(v(16 + 16 * ks + 4 * k), sT2, 4096 * ks + 1024 * k, sT1))
            for k in range(4): o.append(self.ld(ag(64 + 16 * ks + 4 * k), sT3, 4096 * ks + 1024 * k, sT1))
            return o
        for ks in range(2): a.extend(sum(loads(ks), []))
        a(f'v_accvgpr_read_b32 v5, a{aZR}\nv_lshrrev_b32 v6, 1, v{vL16}\ns_add_u32 s{sT0}, s{sL16K}, {LB}\nv_add_u32 v6, s{sT0}, v6')
        a('v_cvt_pk_bf16_f32 v100, v96, v97\nv_cvt_pk_bf16_f32 v101, v98, v99\nds_write_b64 v6, v[100:101] offset:12288')
        def stA(ks):
            o = []
            for h in range(2): o.append(f'ds_read_b128 {v(88+4*h)}, v5 offset:{12288 + 64*(2*ks+h)}')
            for h in range(2):
                b = 16 + 16 * ks + 8 * h
                for q in range(4): o.append(f'v_cvt_pk_bf16_f32 v{80+4*h+q}, v{b+2*q}, v{b+2*q+1}')
            for h in range(2):
                for tt in range(2):
                    nd = 96 + 8 * (2 * h + tt); pq = ag(64 + 16 * ks + 8 * h + 4 * tt)
                    o.append(f'{M16} {v(nd+4)}, {v(88+4*h)}, {pq}, 0')
                    o.append(f'{M16} {v(nd)}, {v(80+4*h)}, {pq}, 0')
            return o
        def stB(ks):
            o = []
            for k in range(4): o.append(f'v_add_f32 v{100+8*k}, 0x358637bd, v{100+8*k}')
            for k in range(4): o.append(f'v_rcp_f32 v{100+8*k}, v{100+8*k}')
            for h in range(2):
                for tt in range(2):
                    nd = 96 + 8 * (2 * h + tt); d = 16 + 16 * ks + 4 * tt + 2 * h
                    for i in range(4): o.append(f'v_mul_f32 v{nd+i}, v{nd+i}, v{nd+4}')
                    o.append(f'v_cvt_pk_bf16_f32 v{d}, v{nd}, v{nd+1}'); o.append(f'v_cvt_pk_bf16_f32 v{d+1}, v{nd+2}, v{nd+3}')
            return o
        def stC(ks):
            o = []
            for f in range(8):
                for tt in range(2):
                    acc = ag(8 * f + 4 * tt)
                    o.append(f'{M16} {acc}, {v(XR + 32*ks + 4*f)}, {v(16 + 16*ks + 4*tt)}, {acc if ks else "0"}')
            return o
        res = [[f'v_accvgpr_read_b32 v7, a{aXE2}', f's_lshl_b32 s{sT0}, s{sTB2}, 15', f's_lshl_b32 s{sT1}, s{sBLK2}, 11', f's_add_u32 s{sT0}, s{sT0}, s{sT1}',
                f's_add_u32 s{sT0}, s{sT0}, {X + xi*0x200000}', f'buffer_load_dwordx4 {v(8)}, v7, s[8:11], s{sT0} offen sc1'],
               [f'buffer_load_dwordx4 {v(12)}, v7, s[8:11], s{sT0} offen offset:256 sc1', f's_add_u32 s{sT2}, s{sW3}, s{sL4K}']]
        slot2 = self.dma4(sL4K, 0x10000, sT2, 0x10000, 'w3a') + self.dma4(sL4K, 0x14000, sT2, 0x14000, 'w3a')
        a.extend(weave([[x] for x in stA(0) + stB(0)], loads(2), start=10, every=5))
        a.extend(stA(1))
        a.extend(weave([[x] for x in weave([[x] for x in stC(0)], stB(1), per=2)], loads(3), start=2, every=5))
        a.extend(stA(2))
        a.extend(weave([[x] for x in weave([[x] for x in stC(1)], stB(2), per=2)], res + slot2[:4], start=2, every=7))
        a.extend(weave([[x] for x in stC(2)], slot2[4:], start=1, every=4))
        a.extend(stA(3)); a.extend(stB(3)); a.extend(stC(3))
        self.stamp()
        def own():
            for k in range(16): a(f'v_accvgpr_read_b32 v{64+k}, a{k}')
            a.wait_tag('w3a')
        self.reduce(lambda q, u: ag(16 * q + 4 * u), lambda q: a(f's_add_u32 s{sT0}, s{sW}, {q}\ns_and_b32 s{sT0}, s{sT0}, 3'), own)
        for q in range(3):
            for k in range(16): a(f'v_add_f32 v{64+k}, v{64+k}, v{80+16*q+k}')
        for tt in range(2):
            val = lambda i: 64 + 8 * (i >> 2) + 4 * tt + (i & 3)
            for q in range(4):
                r = 8 + 4 * tt + q
                a(f'v_lshlrev_b32 v6, 16, v{r}\nv_and_b32 v{r}, 0xffff0000, v{r}\nv_add_f32 v{val(2*q)}, v{val(2*q)}, v6\nv_add_f32 v{val(2*q+1)}, v{val(2*q+1)}, v{r}')
                a(f'v_cvt_pk_bf16_f32 v{80+4*tt+q}, v{val(2*q)}, v{val(2*q+1)}')
            if tt == 0:
                a(f's_lshl_b32 s{sT0}, s{sTB2}, 15\ns_lshl_b32 s{sT1}, s{sBLK2}, 11\ns_add_u32 s{sT0}, s{sT0}, s{sT1}\ns_add_u32 s{sT0}, s{sT0}, {X + (xi+1)*0x200000}')
            a(f'buffer_store_dwordx4 {v(80+4*tt)}, v7, s[8:11], s{sT0} offen offset:{256*tt} sc1', 'pub')
            sm, sq = 88 + tt, 90 + tt
            a(f'v_add_f32 v{sm}, v{val(0)}, v{val(1)}\nv_mul_f32 v{sq}, v{val(0)}, v{val(0)}\nv_fmac_f32 v{sq}, v{val(1)}, v{val(1)}')
            for i in range(2, 8): a(f'v_add_f32 v{sm}, v{sm}, v{val(i)}\nv_fmac_f32 v{sq}, v{val(i)}, v{val(i)}')
        a(f'v_accvgpr_read_b32 v6, a{aST2}\nv_permlane32_swap_b32 v88, v89\nv_permlane32_swap_b32 v90, v91\nv_add_f32 v88, v88, v89\nv_add_f32 v90, v90, v91')
        a(f's_lshl_b32 s{sT0}, s{sTB2}, 12\ns_lshl_b32 s{sT1}, s{sBLK2}, 8\ns_add_u32 s{sT0}, s{sT0}, s{sT1}\ns_add_u32 s{sT0}, s{sT0}, {ST + (xi+1)*0x40000}')
        a('v_permlane16_swap_b32 v88, v90\nv_add_f32 v88, v88, v90')
        a(f'buffer_store_dword v88, v6, s[8:11], s{sT0} offen sc1', 'pub')
        a(f's_add_u32 s{sT2}, s{sW3}, s{sL16K}')
        d34 = [self.dma4(sL16K, LB + 4096 * b, sT2, LB + 4096 * b, 'w3b') for b in range(4)]
        for b in range(2): a.extend(sum(d34[b], []))
        a.wait_tag('pub')
        a(f's_lshl_b32 s{sT0}, s{sTB2}, 7\ns_add_u32 s{sT0}, s{sT0}, {X1C + l*0x2000}')
        self.arrive(sT0)
        self.stamp()
        for b in range(2, 4): a.extend(sum(d34[b], []))

    def p3(self, l):
        a = self.a; xi = 2 * l + 1; NX0 = 14; WB = 64
        a(f's_lshl_b32 s{sT0}, s{sTB}, 7\ns_add_u32 s{sT0}, s{sT0}, {X1C + l*0x2000}\nv_mov_b32 v7, 0')
        self.poll(7, sT0, 16)
        self.stamp()
        a.extend(self.stat_loads(xi))
        a(f's_add_u32 s{sT3}, s{sXB}, {X + xi*0x200000}')
        for s in range(NX0): a.extend(self.xload(xi, s))
        slot = [0, 1, 2, 3, 4, 0, 1]
        acc = [16, 32, 48, 104, 16, 32, 48]
        order = [(i, s) for s in range(32) for i in range(3)] + [(i, s) for i in range(3, 7) for s in range(32)]
        PD = 7
        rd = lambda n: f'ds_read_b128 {v(WB + 4*(n%8))}, {self.lds(32768*slot[order[n][0]] + 1024*order[n][1])}'
        for n in range(PD): a(rd(n))
        a.extend([f'v_accvgpr_read_b32 v9, a{aBP}'] + self.rstd())
        a('ds_bpermute_b32 v5, v9, v96')
        a(f's_mul_i32 s{sT0}, s{sTB}, 112\ns_mul_i32 s{sT2}, s{sJ}, 7\ns_add_u32 s{sT0}, s{sT0}, s{sT2}\ns_lshl_b32 s{sT0}, s{sT0}, 10\ns_add_u32 s34, s{sT0}, {H + l*0x700000}\ns_add_u32 s35, s34, 4096')
        a(f's_add_u32 s{sT2}, s{sW3}, s{sL4K}')
        a('v_mul_f32 v5, v5, v5')
        def epi(i):
            b = acc[i]; d = 96 + 4 * (i % 2); o = []
            for q in range(4):
                for k in (2 * q, 2 * q + 1):
                    o += [f'v_mul_f32 v{b+k}, v{b+k}, v5', f'v_mul_f32 v{b+k}, v{b+k}, v{b+8+k}']
                o.append(f'v_cvt_pk_bf16_f32 v{d+q}, v{b+2*q}, v{b+2*q+1}')
            o.append((f'buffer_store_dwordx4 {v(d)}, v{vL16}, s[8:11], s{34 if i < 4 else 35} offen offset:{1024*(i%4)} sc1', f'h{i}'))
            return o
        w4 = [self.ld(ag(4 * e), sW4, 1024 * e, sT1, sc=False) for e in range(56)]
        d56 = []
        for b in range(4): d56 += self.dma4(sL4K, 16384 * b, sT2, 5 * 32768 + 16384 * b, 'w3c')
        resl = [[f's_lshl_b32 s36, s{sTB4}, 15', f's_lshl_b32 s37, s{sBLK4}, 11', 's_add_u32 s36, s36, s37', f's_add_u32 s36, s36, {X + xi*0x200000}',
                 f'buffer_load_dwordx4 {v(8)}, v{vL16}, s[8:11], s36 offen sc1'], [f'buffer_load_dwordx4 {v(12)}, v{vL16}, s[8:11], s36 offen offset:1024 sc1']]
        ins = {}
        def put(n, x): ins.setdefault(n, []).extend(x if isinstance(x, list) else [x])
        for s in range(NX0, 32): put(3 * (s - NX0), self.xload(xi, s))
        for k in range(14): put(54 + 3 * k, w4[k])
        put(48, ['s_barrier'])
        put(104, ['s_barrier'])
        for k, g in enumerate(d56): put(105 + 2 * k, g)
        for k, g in enumerate(resl): put(138 + k, g)
        for k in range(14, 56): put(140 + 2 * (k - 14) - (0 if k < 54 else 2), w4[k])
        put(150, [('wait_tag', 'w3c'), 's_barrier'])
        ep = epi(0) + epi(1) + epi(2)
        for k, x in enumerate(ep): put(98 + k // 2, x)
        for i in range(3, 6):
            for k, x in enumerate(epi(i)): put(96 + 32 * (i - 2) + 4 + k, x)
        for n, (i, s) in enumerate(order):
            c = v(acc[i], 16) if s else '0'
            a(f'{M32} {v(acc[i],16)}, {v(WB + 4*(n%8))}, {v(XR+4*s)}, {c}')
            if n + PD < len(order): a(rd(n + PD))
            a.extend(ins.get(n, []))
        self.stamp()
        a('s_barrier')
        a.extend(epi(6))
        a(f's_lshl_b32 s{sT0}, s{sTB}, 2\ns_lshr_b32 s{sT1}, s{sJ}, 2\ns_add_u32 s{sT0}, s{sT0}, s{sT1}\ns_lshl_b32 s{sT0}, s{sT0}, 7\ns_add_u32 s{sT0}, s{sT0}, {HC + l*0x8000}')
        a.wait_tag('h6')
        self.arrive(sT0)
        self.stamp()

    def p4(self, l):
        a = self.a
        a(f's_and_b32 s{sT0}, s{sTB4}, -2\ns_lshl_b32 s{sT0}, s{sT0}, 2\ns_add_u32 s{sT0}, s{sT0}, s{sW}\ns_lshl_b32 s{sT0}, s{sT0}, 7\ns_add_u32 s{sT0}, s{sT0}, {HC + l*0x8000}')
        a(f'v_and_b32 v7, 16, v{vL16}\nv_lshlrev_b32 v7, 5, v7')
        for (sb, tb) in ((sT2, sTBA), (sT3, sTBB)):
            a(f's_mul_i32 s{sb}, s{tb}, 112\ns_mul_i32 s{sT1}, s{sW}, 28\ns_add_u32 s{sb}, s{sb}, s{sT1}\ns_lshl_b32 s{sb}, s{sb}, 10\ns_add_u32 s{sb}, s{sb}, {H + l*0x700000}')
        self.poll(7, sT0, 4)
        self.stamp()
        hreg = lambda e: XR + 4 * e if e < 32 else (80 + 4 * (e - 32) if e < 44 else XR + 4 * (e - 44))
        def hl(e):
            idx, b = e >> 1, e & 1; i, jj = idx >> 2, idx & 3
            return self.ld(v(hreg(e)), (sT2, sT3)[b], 1024 * (7 * jj + i), sT1)
        NH0 = 16
        for e in range(NH0): a.extend(hl(e))
        extra = []
        if l == 0:
            for b in range(6): extra += self.dma4(sL4K, 16384 * b, sW1, W1 + 16384 * b, 'w1')
        e = NH0
        for idx in range(28):
            for b in range(2):
                if e < 56: a.extend(hl(e)); e += 1
                elif extra: a.extend(extra.pop(0))
                for t in range(2):
                    acc = v(16 + 16 * (t + 2 * b), 16)
                    a(f'{M32} {acc}, {ag(8*idx + 4*t)}, {v(hreg(2*idx+b))}, {acc if idx else "0"}')
        self.stamp()
        rest = extra
        self.reduce(lambda q, u: v(16 + 16 * q + 4 * u), lambda q: a(f's_xor_b32 s{sT0}, s{sW}, {q}'), lambda: None)
        for g in rest: a.extend(g)
        for q in range(3):
            for k in range(16): a(f'v_add_f32 v{16+k}, v{16+k}, v{80+16*q+k}')
        if l == 0:
            a(f's_lshl_b32 s{sT0}, s{sTB4}, 15\ns_lshl_b32 s{sT1}, s{sBLK4}, 11\ns_add_u32 s{sT0}, s{sT0}, s{sT1}\ns_add_u32 s{sT0}, s{sT0}, {X + 2*0x200000}')
        else:
            a(f'v_accvgpr_read_b32 v7, a{aOUT}\ns_lshl_b32 s{sT0}, s{sTB4}, 15\ns_lshl_b32 s{sT1}, s{sBLK4}, 6\ns_add_u32 s{sT0}, s{sT0}, s{sT1}')
        for u in range(2):
            for q in range(4):
                r = 8 + 4 * u + q; y = 16 + 8 * u + 2 * q
                a(f'v_lshlrev_b32 v6, 16, v{r}\nv_and_b32 v{r}, 0xffff0000, v{r}\nv_add_f32 v{y}, v{y}, v6\nv_add_f32 v{y+1}, v{y+1}, v{r}')
                a(f'v_cvt_pk_bf16_f32 v{32+4*u+q}, v{y}, v{y+1}')
            if l == 0: a(f'buffer_store_dwordx4 {v(32+4*u)}, v{vL16}, s[8:11], s{sT0} offen offset:{1024*u} sc1', 'pub')
            else: a(f'buffer_store_dwordx4 {v(32+4*u)}, v7, s[12:15], s{sT0} offen offset:{32*u}')
        if l == 0:
            a('v_add_f32 v40, v16, v17\nv_mul_f32 v41, v16, v16\nv_fmac_f32 v41, v17, v17')
            for k in range(2, 16): a(f'v_add_f32 v40, v40, v{16+k}\nv_fmac_f32 v41, v{16+k}, v{16+k}')
            a(f'v_accvgpr_read_b32 v6, a{aST4}\ns_lshl_b32 s{sT0}, s{sTB4}, 12\ns_lshl_b32 s{sT1}, s{sBLK4}, 8\ns_add_u32 s{sT0}, s{sT0}, s{sT1}\ns_add_u32 s{sT0}, s{sT0}, {ST + 2*0x40000}')
            a('v_permlane32_swap_b32 v40, v41\nv_add_f32 v40, v40, v41')
            a(f'buffer_store_dword v40, v6, s[8:11], s{sT0} offen sc1', 'pub')
            a(f's_lshl_b32 s{sT0}, s{sTB4}, 7\ns_add_u32 s{sT0}, s{sT0}, {X2C}')
            a.wait_tag('pub')
            self.arrive(sT0)
        self.stamp()

    def finish(self):
        a = self.a
        if self.cfg.get('diag'):
            a('s_memrealtime s[58:59]\ns_waitcnt vmcnt(0) lgkmcnt(0)')
            a(f's_lshl_b32 s{sT0}, s2, 2\ns_add_u32 s{sT0}, s{sT0}, s{sW}\ns_lshl_b32 s{sT0}, s{sT0}, 8\ns_add_u32 s{sT0}, s{sT0}, {DBG}\nv_mov_b32 v6, 0\ns_mov_b64 exec, 1')
            vals = [56, 58] + [60 + k for k in range(self.nstamp)]
            for k, s in enumerate(vals):
                a(f'v_mov_b32 v7, s{s}\nbuffer_store_dword v7, v6, s[8:11], s{sT0} offen offset:{4*k}')
        a('s_endpgm')
        return a.finish()

def gen_main(name, cfg):
    g = Gen(name, cfg)
    g.init()
    stop = cfg.get('stop', 99); n = 0
    for l in range(2):
        for ph in (g.p1, g.p2, g.p3, g.p4):
            if n < stop: ph(l)
            n += 1
    txt = g.finish()
    return txt, g
```

```python
from asmlib import Asm
from layout import *

NJOBS = 296
def srd(a, d, lo, size):
    a(f's_mov_b32 s{d}, s{lo}\ns_and_b32 s{d+1}, s{lo+1}, 0xffff\ns_mov_b32 s{d+2}, {size}\ns_mov_b32 s{d+3}, 0x20000')

def bit(a, dst, src, b):
    a(f'v_bfe_u32 v{dst}, v{src}, {b}, 1')

def onehot(a, dst, vi, vcond, tmp):
    a(f'v_and_b32 v{tmp}, 1, v{vi}\nv_lshlrev_b32 v{tmp}, 4, v{tmp}\nv_mov_b32 v{tmp+1}, 0x3f80\nv_lshlrev_b32 v{tmp}, v{tmp}, v{tmp+1}')
    a(f'v_cmp_ne_u32 vcc, 0, v{vcond}\nv_cndmask_b32 v{tmp}, 0, v{tmp}, vcc\nv_lshrrev_b32 v{tmp+1}, 1, v{vi}')
    for q in range(4):
        a(f'v_cmp_eq_u32 vcc, {q}, v{tmp+1}\nv_cndmask_b32 v{dst+q}, 0, v{tmp}, vcc')

def gen_prep(name):
    a = Asm()
    a(f'.globl {name}\n.p2align 8\n.type {name},@function\n{name}:')
    a(f's_cmp_ge_u32 s2, {NJOBS}\ns_cbranch_scc1 L_prep_end')
    a('s_load_dwordx16 s[16:31], s[0:1], 0\ns_load_dwordx2 s[32:33], s[0:1], 80')
    a('v_and_b32 v1, 63, v0\nv_lshrrev_b32 v10, 6, v0\nv_and_b32 v2, 31, v1\nv_lshrrev_b32 v3, 5, v1')
    a('v_readfirstlane_b32 s3, v10')
    bit(a, 4, 2, 2); bit(a, 5, 2, 3); bit(a, 6, 2, 4)
    a('v_and_b32 v7, 3, v2\nv_lshlrev_b32 v9, 4, v1')
    a('s_waitcnt lgkmcnt(0)')
    srd(a, 8, 32, WS_END)
    a(f's_cmp_lg_u32 s3, 0\ns_cbranch_scc1 L_prep_nz\ns_cmp_ge_u32 s2, {ZR_KB}\ns_cbranch_scc1 L_prep_nz')
    a(f'v_mov_b32 v12, 0\nv_mov_b32 v13, 0\nv_mov_b32 v14, 0\nv_mov_b32 v15, 0\ns_lshl_b32 s4, s2, 10\ns_add_u32 s4, s4, {ZR}')
    a('buffer_store_dwordx4 v[12:15], v9, s[8:11], s4 offen')
    a.drain(vm=True)
    a('L_prep_nz:')
    a('s_cmp_lt_u32 s2, 48\ns_cbranch_scc1 L_prep_w1\ns_cmp_lt_u32 s2, 160\ns_cbranch_scc1 L_prep_gu')
    a('s_cmp_lt_u32 s2, 216\ns_cbranch_scc1 L_prep_wd\ns_cmp_lt_u32 s2, 232\ns_cbranch_scc1 L_prep_wo\ns_branch L_prep_x')

    def rowmap(kind, stride):
        if kind == 'std':
            a('v_lshlrev_b32 v11, 4, v6\nv_lshl_add_u32 v11, v4, 3, v11\nv_lshl_add_u32 v11, v5, 2, v11\nv_add_u32 v11, v11, v7')
        else:
            a('v_lshlrev_b32 v11, 4, v5\nv_lshl_add_u32 v11, v4, 3, v11\nv_lshl_add_u32 v11, v6, 2, v11\nv_add_u32 v11, v11, v7')
        a(f'v_mul_u32_u24 v11, {stride}, v11\nv_lshl_add_u32 v11, v3, 4, v11')

    def loads(srd1, srd2, off2, stride):
        for m in range(4):
            a(f'buffer_load_dwordx4 v[{64+8*m}:{67+8*m}], v11, s[{srd1}:{srd1+3}], s4 offen')
            a(f'buffer_load_dwordx4 v[{68+8*m}:{71+8*m}], v11, s[{srd2}:{srd2+3}], s4 offen offset:{off2}')
            if m < 3: a(f's_add_u32 s4, s4, {32*stride}')

    def sel(vcond_hi_eq, vhalf, vi4):
        a(f'v_lshl_add_u32 v12, v{vi4}, 2, v7')
        a(f'v_cmp_eq_u32 vcc, v3, v{vcond_hi_eq}\nv_cndmask_b32 v13, 0, 1, vcc')
        a(f'v_and_b32 v14, v13, v{vhalf}\nv_sub_u32 v13, v13, v14')
        onehot(a, 16, 12, 13, 24); onehot(a, 20, 12, 14, 24)

    def mfmas():
        for m in range(4):
            d = 96 + 16 * m
            a(f'v_mfma_f32_32x32x16_bf16 v[{d}:{d+15}], v[{64+8*m}:{67+8*m}], v[16:19], 0')
            a(f'v_mfma_f32_32x32x16_bf16 v[{d}:{d+15}], v[{68+8*m}:{71+8*m}], v[20:23], v[{d}:{d+15}]')

    def center():
        a('v_add_f32 v24, v96, v97\nv_add_f32 v25, v98, v99')
        for i in range(100, 160, 2):
            a(f'v_add_f32 v24, v24, v{i}\nv_add_f32 v25, v25, v{i+1}')
        a('v_add_f32 v24, v24, v25\nv_mov_b32 v25, v24\nv_permlane32_swap_b32 v24, v25\nv_add_f32 v24, v24, v25')
        a('s_lshl_b32 s5, s3, 8\nv_lshlrev_b32 v26, 2, v1\nv_add_u32 v27, s5, v26\nds_write_b32 v27, v24')
        a.drain(lgkm=True)
        a('s_barrier')
        for w in range(4): a(f'ds_read_b32 v{28+w}, v26 offset:{256*w}')
        a('v_add_f32 v28, v28, v29\nv_add_f32 v30, v30, v31\nv_add_f32 v28, v28, v30\nv_mul_f32 v28, 0x3b000000, v28')
        for i in range(96, 160): a(f'v_sub_f32 v{i}, v{i}, v28')

    def pack_store(vaddr, soff_fn, imm_fn=lambda m, u: 0):
        for m in range(4):
            for u in range(2):
                s = 96 + 16 * m + 8 * u; d = 32 + 4 * (2 * m + u)
                for q in range(4): a(f'v_cvt_pk_bf16_f32 v{d+q}, v{s+2*q}, v{s+2*q+1}')
                soff_fn(m, u)
                a(f'buffer_store_dwordx4 v[{d}:{d+3}], v{vaddr}, s[8:11], s6 offen offset:{imm_fn(m, u)}')
        a('s_endpgm')

    a('L_prep_w1:')
    srd(a, 12, 18, 512 * 1536 * 2)
    rowmap('std', 3072)
    a('s_and_b32 s34, s2, 15\ns_lshr_b32 s35, s2, 4')
    a('s_add_u32 s5, s35, 1\ns_cmp_eq_u32 s35, 2\ns_cselect_b32 s5, 0, s5')
    a(f's_lshl_b32 s5, s5, 10\ns_lshl_b32 s4, s34, 6\ns_add_u32 s4, s4, s5\ns_mul_i32 s5, s3, {128*3072}\ns_add_u32 s4, s4, s5')
    loads(12, 12, 32, 3072)
    a('s_cmp_eq_u32 s35, 1\ns_cbranch_scc1 L_prep_v')
    srd(a, 36, 20, 32 * 16 * 16 * 2)
    a('v_lshl_add_u32 v12, v5, 2, v7\nv_lshl_add_u32 v12, v6, 3, v12\nv_lshlrev_b32 v12, 1, v12')
    a('v_lshl_add_u32 v12, v3, 8, v12\nv_lshl_add_u32 v12, v4, 9, v12\ns_lshl_b32 s5, s34, 10')
    for i in range(8):
        a(f'buffer_load_ushort v{40+i}, v12, s[36:39], s5 offen offset:{32*i}')
    for q in range(4):
        a(f'v_lshl_or_b32 v{24+q}, v{41+2*q}, 16, v{40+2*q}')
    a('v_cmp_ne_u32 vcc, 0, v4')
    for q in range(4):
        a(f'v_cndmask_b32 v{16+q}, v{24+q}, 0, vcc\nv_cndmask_b32 v{20+q}, 0, v{24+q}, vcc')
    a.drain(vm=True)
    a('s_branch L_prep_w1b')
    a('L_prep_v:')
    sel(5, 6, 4)
    a('s_waitcnt vmcnt(0)')
    a('L_prep_w1b:\ns_nop 1')
    mfmas(); center()
    a(f's_mul_i32 s40, s34, {96*1024}\ns_cmp_eq_u32 s35, 2\ns_cselect_b32 s41, 1, 2\ns_cselect_b32 s5, 0x10000, 0\ns_lshl_b32 s41, s41, 10')
    a('s_add_u32 s40, s40, s5\ns_cmp_eq_u32 s35, 1\ns_cselect_b32 s5, 1024, 0\ns_add_u32 s40, s40, s5')
    a(f's_lshl_b32 s5, s3, 3\ns_mul_i32 s5, s5, s41\ns_add_u32 s6, s40, s5\ns_sub_u32 s6, s6, s41\ns_add_u32 s6, s6, {W1}')
    pack_store(9, lambda m, u: a('s_add_u32 s6, s6, s41'))

    a('L_prep_gu:')
    srd(a, 12, 26, 512 * 1792 * 2); srd(a, 36, 28, 512 * 1792 * 2)
    rowmap('std', 3584)
    a(f's_sub_u32 s34, s2, 48\ns_lshl_b32 s4, s34, 5\ns_mul_i32 s5, s3, {128*3584}\ns_add_u32 s4, s4, s5')
    loads(12, 36, 0, 3584)
    sel(4, 6, 5)
    mfmas(); center()
    a(f's_lshl_b32 s6, s34, 15\ns_lshl_b32 s5, s3, 13\ns_add_u32 s6, s6, s5\ns_add_u32 s6, s6, {W3 - 1024}')
    pack_store(9, lambda m, u: a('s_add_u32 s6, s6, 1024'))

    a('L_prep_wd:')
    srd(a, 12, 30, 1792 * 512 * 2)
    rowmap('std', 1024)
    a('s_sub_u32 s34, s2, 160\ns_lshl_b32 s34, s34, 2\ns_add_u32 s34, s34, s3')
    a('s_mul_i32 s35, s34, 4682\ns_lshr_b32 s35, s35, 16\ns_mul_i32 s5, s35, 14\ns_sub_u32 s34, s34, s5')
    a('s_lshl_b32 s4, s34, 17\ns_lshl_b32 s5, s35, 6\ns_add_u32 s4, s4, s5')
    loads(12, 12, 32, 1024)
    sel(4, 6, 5)
    mfmas()
    def wd_off(m, u):
        a(f's_lshl_b32 s40, s34, 3\ns_add_u32 s40, s40, {2*m+u}\ns_mul_i32 s41, s40, 147\ns_lshr_b32 s41, s41, 10')
        a('s_mul_i32 s42, s41, 7\ns_sub_u32 s42, s40, s42\ns_lshr_b32 s43, s41, 2\ns_and_b32 s41, s41, 3')
        a('s_lshl_b32 s42, s42, 2\ns_add_u32 s42, s42, s41\ns_lshl_b32 s42, s42, 1\ns_xor_b32 s41, s35, s43\ns_and_b32 s41, s41, 1\ns_add_u32 s42, s42, s41')
        a('s_lshr_b32 s41, s35, 1\ns_lshl_b32 s41, s41, 2\ns_add_u32 s41, s41, s43\ns_mul_i32 s41, s41, 56\ns_add_u32 s41, s41, s42')
        a(f's_lshl_b32 s6, s41, 10\ns_add_u32 s6, s6, {W4}')
    pack_store(9, wd_off)

    a('L_prep_wo:')
    srd(a, 12, 22, 512 * 512 * 2)
    rowmap('o', 1024)
    a('s_sub_u32 s35, s2, 216\ns_lshl_b32 s4, s3, 17\ns_lshl_b32 s5, s35, 6\ns_add_u32 s4, s4, s5')
    loads(12, 12, 32, 1024)
    sel(4, 5, 6)
    mfmas()
    a('v_and_b32 v12, 15, v2\nv_lshlrev_b32 v12, 4, v12\nv_lshl_add_u32 v12, v3, 9, v12\nv_lshl_add_u32 v12, v6, 10, v12')
    a('s_lshr_b32 s40, s35, 2\ns_lshl_b32 s40, s40, 2\ns_add_u32 s40, s40, s3\ns_lshl_b32 s40, s40, 15')
    a(f's_sub_u32 s41, s35, s3\ns_and_b32 s41, s41, 3\ns_lshl_b32 s41, s41, 11\ns_add_u32 s40, s40, s41\ns_add_u32 s40, s40, {W2}')
    pack_store(12, lambda m, u: a(f's_add_u32 s6, s40, {8192*m}'), lambda m, u: 256 * u)

    a('L_prep_x:')
    srd(a, 12, 16, 2048 * 512 * 2)
    a('s_sub_u32 s35, s2, 232\nv_lshlrev_b32 v11, 10, v2\nv_lshl_add_u32 v11, v3, 4, v11')
    a('s_lshl_b32 s4, s35, 15\ns_lshl_b32 s5, s3, 8\ns_add_u32 s4, s4, s5')
    for s in range(8): a(f'buffer_load_dwordx4 v[{64+4*s}:{67+4*s}], v11, s[12:15], s4 offen offset:{32*s}')
    a(f's_lshl_b32 s6, s35, 15\ns_lshl_b32 s5, s3, 13\ns_add_u32 s6, s6, s5\ns_add_u32 s6, s6, {X}\ns_add_u32 s7, s6, 4096')
    a('v_mov_b32 v24, 0\nv_mov_b32 v25, 0')
    for s in range(8):
        a(f'buffer_store_dwordx4 v[{64+4*s}:{67+4*s}], v9, s[8:11], s{6 if s < 4 else 7} offen offset:{1024*(s%4)}')
        for q in range(4):
            r = 64 + 4 * s + q
            a(f'v_lshlrev_b32 v26, 16, v{r}\nv_and_b32 v27, 0xffff0000, v{r}')
            a('v_add_f32 v24, v24, v26\nv_fmac_f32 v25, v26, v26\nv_add_f32 v24, v24, v27\nv_fmac_f32 v25, v27, v27')
    a('v_permlane32_swap_b32 v24, v25\nv_add_f32 v24, v24, v25')
    a(f'v_lshl_add_u32 v26, v2, 1, v3\nv_lshlrev_b32 v26, 2, v26\ns_lshl_b32 s6, s35, 12\ns_lshl_b32 s5, s3, 10\ns_add_u32 s6, s6, s5\ns_add_u32 s6, s6, {ST}')
    a('v_mov_b32 v27, 0\nbuffer_store_dword v24, v26, s[8:11], s6 offen')
    for q in range(1, 4): a(f'buffer_store_dword v27, v26, s[8:11], s6 offen offset:{256*q}')
    a('L_prep_end:\ns_endpgm')
    return a.finish()
```

```python
import sys
sys.path.insert(0, 'gen')
import prep, mainq
HEAD = open('interleave_layers__linear_kernel_hedgehog__glu_gated_bilinear__prompt.s.ref').read().split('; Override launch')[0]
def kd(name, vg, acc, sg=102):
    return (f'.p2align 6\n.amdhsa_kernel {name}\n  .amdhsa_next_free_vgpr {vg}\n  .amdhsa_next_free_sgpr {sg}\n  .amdhsa_accum_offset {acc}\n'
            '  .amdhsa_group_segment_fixed_size 0\n  .amdhsa_kernarg_size 88\n  .amdhsa_user_sgpr_count 2\n  .amdhsa_user_sgpr_kernarg_segment_ptr 1\n'
            '  .amdhsa_system_sgpr_workgroup_id_x 1\n  .amdhsa_float_denorm_mode_32 3\n.end_amdhsa_kernel\n')
def build(cfg):
    m, g = mainq.gen_main('main_kernel', cfg)
    s = HEAD
    s += f'; @launch kernel=prep_kernel grid=({prep.NJOBS},1,1) block=(256,1,1) lds=1024\n'
    s += '; @launch kernel=main_kernel grid=(256,1,1) block=(256,1,1) lds=163840\n'
    s += '.amdgcn_target "amdgcn-amd-amdhsa--gfx950"\n.text\n'
    s += prep.gen_prep('prep_kernel') + m
    s += '.section .rodata,"a"\n' + kd('prep_kernel', 160, 160, 64) + kd('main_kernel', 512, 256)
    return s, g
if __name__ == '__main__':
    cfg = {}
    out = sys.argv[1]
    for kv in sys.argv[2:]:
        k, val = kv.split('='); cfg[k] = int(val) if val.lstrip('-').isdigit() else val
    s, g = build(cfg)
    open(out, 'w').write(s)
    print('lines', len(s.splitlines()), 'stats', g.a.stats, 'stamps', g.nstamp)
```

```python
import re

REG = re.compile(r'^(-|abs\()?([vas])(\d+|\[(\d+):(\d+)\])\)?$')

def regs_of(op):
    op = op.strip()
    if op in ('vcc', 'vcc_lo', 'vcc_hi'): return {('s', 'vcc')}
    if op in ('exec', 'exec_lo', 'exec_hi'): return {('s', 'exec')}
    if op == 'm0': return {('s', 'm0')}
    m = REG.match(op)
    if not m: return set()
    k = m.group(2)
    if m.group(4) is not None:
        return {(k, i) for i in range(int(m.group(4)), int(m.group(5)) + 1)}
    return {(k, int(m.group(3)))}

TRANS = ('v_exp_f32', 'v_log_f32', 'v_rcp_f32', 'v_rsq_f32', 'v_sqrt_f32', 'v_sin_f32', 'v_cos_f32')
RMW = ('v_fmac_f32', 'v_dot2c_f32_bf16', 'v_pk_fmac')

class Ins:
    def __init__(self, text, tag=None):
        self.text = text; self.tag = tag
        t = text.split(';')[0].strip()
        self.label = t.endswith(':')
        self.directive = t.startswith('.')
        parts = t.split(None, 1)
        self.op = parts[0] if parts else ''
        rest = parts[1] if len(parts) > 1 else ''
        rest = re.split(r'\s(?:op_sel|op_sel_hi|neg_lo|neg_hi):', rest)[0]
        ops = [x.strip() for x in rest.split(',')] if rest else []
        mods = ''
        if ops:
            sp = ops[-1].split(None, 1)
            ops[-1] = sp[0] if sp else ''
            mods = sp[1] if len(sp) > 1 else ''
        self.ops = ops; self.mods = mods
        op = self.op
        self.mfma = op.startswith('v_mfma')
        self.valu = op.startswith('v_') and not self.mfma
        self.vmem = op.startswith('buffer_') or op.startswith('global_')
        self.ds = op.startswith('ds_')
        self.smem = op.startswith(('s_load', 's_memtime', 's_memrealtime', 's_atomic'))
        self.trans = any(op.startswith(x) for x in TRANS)
        self.lds_dma = self.vmem and re.search(r'\blds\b', mods) is not None
        R = [regs_of(o) for o in ops]
        U = lambda l: set().union(*l) if l else set()
        self.w = set(); self.r = set(); self.mem_dst = set(); self.store_data = set()
        self.srcc = set(); self.srcab = set()
        if self.label or self.directive or not op:
            pass
        elif self.mfma:
            self.w = R[0]; self.r = U(R[1:]); self.srcab = R[1] | R[2]; self.srcc = R[3]
            self.passes = 8 if '32x32x16' in op else 4
        elif self.valu:
            if op.startswith('v_permlane') and 'swap' in op:
                self.w = R[0] | R[1]; self.r = R[0] | R[1]
            elif op.startswith('v_cmp'):
                self.w = R[0]; self.r = U(R[1:])
            elif op.startswith(('v_add_co', 'v_sub_co', 'v_addc_co', 'v_subb_co')):
                self.w = R[0] | R[1]; self.r = U(R[2:])
            else:
                self.w = R[0]; self.r = U(R[1:])
                if any(op.startswith(x) for x in RMW): self.r |= R[0]
                if op.startswith('v_cndmask') and len(ops) == 3: self.r |= {('s', 'vcc')}
        elif self.vmem:
            if self.lds_dma:
                self.r = U(R) | {('s', 'm0')}
            elif '_load' in op:
                self.mem_dst = R[0]; self.r = U(R[1:])
                if 'd16' in op: self.r |= R[0]
            else:
                self.r = U(R); self.store_data = R[0]
                if 'atomic' in op and re.search(r'\bsc0\b', mods): self.mem_dst = R[0]
        elif self.ds:
            if op.startswith(('ds_read', 'ds_bpermute', 'ds_permute', 'ds_swizzle')):
                self.mem_dst = R[0]; self.r = U(R[1:])
            else:
                self.r = U(R)
        elif self.smem:
            self.mem_dst = R[0]; self.r = U(R[1:])
            if op.startswith('s_atomic'): self.r |= R[0]
        elif op.startswith('s_'):
            if op.startswith(('s_cmp', 's_cbranch', 's_branch', 's_waitcnt', 's_barrier', 's_nop', 's_endpgm', 's_sleep', 's_setprio', 's_setpc', 's_bitcmp')):
                self.r = U(R)
                if 'vcc' in op: self.r |= {('s', 'vcc')}
                if 'exec' in op: self.r |= {('s', 'exec')}
            else:
                self.w = R[0]; self.r = U(R[1:])
                if 'saveexec' in op: self.w |= {('s', 'exec')}; self.r |= {('s', 'exec')}
        self.wide_store = self.vmem and not self.lds_dma and ('_store_dwordx4' in op or '_store_dwordx3' in op)

class Asm:
    def __init__(self):
        self.items = []
    def __call__(self, text, tag=None):
        for line in text.split('\n'):
            line = line.strip()
            if line: self.items.append(Ins(line, tag))
    def wait_tag(self, tag):
        self.items.append(('wait_tag', tag))
    def drain(self, vm=False, lgkm=False):
        self.items.append(('drain', vm, lgkm))
    def forget(self):
        self.items.append(('forget',))
    def extend(self, lst):
        for x in lst:
            if isinstance(x, str): self(x)
            elif isinstance(x, tuple) and x and x[0] in ('wait_tag', 'drain', 'forget'): self.items.append(x)
            elif isinstance(x, tuple): self(x[0], x[1])
            else: self.items.append(x)

    def finish(self):
        out = []
        vmq = []; lgq = []
        hist = []
        stats = {'nop': 0, 'wait': 0}; snaps = {}; seen = set()
        def emit(text):
            out.append('    ' + text)
        def push(ins):
            hist.append(ins)
            if len(hist) > 24: hist.pop(0)
        def do_wait(vm=None, lg=None):
            nonlocal vmq, lgq
            parts = []
            if vm is not None and vm < len(vmq):
                assert vm <= 63
                parts.append(f'vmcnt({vm})'); vmq = vmq[len(vmq) - vm:] if vm else []
            if lg is not None and lg < len(lgq):
                tgt = len(lgq) - 1 - lg
                if lg == 0 or lgq[tgt][1]:
                    parts.append('lgkmcnt(0)'); lgq = []
                else:
                    n = sum(1 for e in lgq[tgt + 1:] if not e[1])
                    parts.append(f'lgkmcnt({n})')
                    lgq = [] if n == 0 else [e for e in lgq[:tgt + 1] if e[1]] + lgq[tgt + 1:]
            if parts:
                t = 's_waitcnt ' + ' '.join(parts); emit(t); push(Ins(t)); stats['wait'] += 1
        def need(q, regs):
            for i in range(len(q) - 1, -1, -1):
                if q[i][0] & regs: return len(q) - 1 - i
            return None
        for it in self.items:
            if isinstance(it, tuple):
                if it[0] == 'forget':
                    vmq = []; lgq = []
                elif it[0] == 'wait_tag':
                    n = None
                    for i in range(len(vmq) - 1, -1, -1):
                        if vmq[i][2] == it[1]: n = len(vmq) - 1 - i; break
                    do_wait(vm=n)
                else:
                    do_wait(vm=0 if it[1] else None, lg=0 if it[2] else None)
                continue
            ins = it
            if ins.label or ins.directive:
                if ins.label and ins.text.strip()[:-1] in snaps: hist[:] = snaps.pop(ins.text.strip()[:-1])
                if ins.label: seen.add(ins.text.strip()[:-1])
                out.append(ins.text); continue
            if ins.op == 's_waitcnt' and 'vslow path' in ins.text:
                vmq.pop()
                emit('s_waitcnt vmcnt(0)'); push(ins); continue
            if ins.op == 's_waitcnt' and 'slow path' in ins.text:
                lgq = []
                emit('s_waitcnt lgkmcnt(0)'); push(ins); continue
            if ins.op == 's_waitcnt':
                m = re.search(r'vmcnt\((\d+)\)', ins.text);
                if m: n = int(m.group(1)); vmq = vmq[len(vmq) - n:] if n < len(vmq) and n else ([] if n == 0 else vmq)
                m = re.search(r'lgkmcnt\((\d+)\)', ins.text)
                if m: n = int(m.group(1)); lgq = lgq[len(lgq) - n:] if n < len(lgq) and n else ([] if n == 0 else lgq)
                emit(ins.text); push(ins); continue
            touched = ins.r | ins.w | ins.mem_dst
            vm = need(vmq, touched); lg = need(lgq, touched)
            if ins.vmem and len(vmq) >= 62: vm = min(vm, 61) if vm is not None else 61
            if (ins.ds or ins.smem) and len(lgq) >= 14:
                k = next((i for i, e in enumerate(lgq) if not e[1]), len(lgq) - 1)
                lg = min(lg, len(lgq) - 1 - k) if lg is not None else len(lgq) - 1 - k
            do_wait(vm, lg)
            req = 0
            for d, p in enumerate(reversed(hist)):
                n = 0
                vw = {x for x in p.w if x[0] in 'va'}
                sw = {x for x in p.w if x[0] == 's'}
                if p.mfma:
                    big = 12 if p.passes == 8 else 8
                    if ins.mfma:
                        if vw & ins.srcab: n = max(n, big)
                        if vw & ins.srcc and not (vw == ins.srcc and p.passes == ins.passes): n = max(n, big - 2)
                        if vw & ins.w and not (vw & ins.srcc): n = max(n, big)
                    elif (ins.valu or ins.vmem or ins.ds) and (vw & touched): n = max(n, big)
                    if ins.valu and (p.srcc & ins.w): n = max(n, 7 if p.passes == 8 else 3)
                    if (ins.vmem or ins.ds) and (p.srcc & ins.mem_dst): n = max(n, 7 if p.passes == 8 else 3)
                elif p.valu:
                    if ins.mfma and (vw & ins.r): n = max(n, 2)
                    if ins.mfma and ('s', 'exec') in sw: n = max(n, 4)
                    if ins.op.startswith('v_permlane') and (vw & ins.r): n = max(n, 2)
                    if 'dpp' in ins.mods or 'row_' in ins.mods or 'quad_perm' in ins.mods:
                        if vw & ins.r: n = max(n, 2)
                    if ins.op.startswith(('v_readlane', 'v_readfirstlane')) and (vw & ins.r): n = max(n, 1)
                    if p.trans and ins.valu and not ins.trans and (vw & ins.r): n = max(n, 1)
                    if p.trans and ins.trans and (vw & ins.r): n = max(n, 1)
                    if ins.vmem and (sw & ins.r): n = max(n, 5)
                    if ins.valu and (sw & ins.r): n = max(n, 2)
                    if ins.op.startswith('s_') and (sw & ins.r): n = max(n, 1)
                elif p.wide_store:
                    if p.store_data & (ins.w | ins.mem_dst): n = max(n, 2)
                elif ('s', 'm0') in sw:
                    if ins.lds_dma: n = max(n, 1)
                req = max(req, n - d)
            while req > 0:
                k = min(req, 16)
                emit(f's_nop {k-1}'); stats['nop'] += k
                for _ in range(k): push(Ins('s_nop 0'))
                req -= k
            emit(ins.text)
            if ins.op == 's_nop':
                for _ in range(int(ins.ops[0]) + 1): push(Ins('s_nop 0'))
            else:
                push(ins)
            if ins.op.startswith('s_cbranch') and ins.ops[0] not in seen and ins.ops[0] not in snaps:
                snaps[ins.ops[0]] = list(hist)
            if ins.vmem: vmq.append((ins.mem_dst, False, ins.tag))
            if ins.ds: lgq.append((ins.mem_dst, False, ins.tag))
            if ins.smem:
                lgq.append((ins.mem_dst, True, ins.tag))
        self.stats = stats
        return '\n'.join(out) + '\n'

def weave(main, fill, start=0, every=1, per=1):
    out = []; fi = 0
    for i, m in enumerate(main):
        out.extend(m if isinstance(m, list) else [m])
        if i >= start and (i - start) % every == 0:
            for _ in range(per):
                if fi < len(fill):
                    f = fill[fi]; out.extend(f if isinstance(f, list) else [f]); fi += 1
    for f in fill[fi:]:
        out.extend(f if isinstance(f, list) else [f])
    return out
```

```python
W1 = 0x0
W2 = 0x180000
W3 = 0x200000
W4 = 0x580000
ZR = 0x740000
KVD = ZR
X1C = ZR + 0x4000
X2C = ZR + 0x8000
HC = ZR + 0xA000
OC = ZR + 0x1A000
ZR_KB = 168
FL = ZR + 0x2A000
FLX = ZR + 0x38000
NW = ZR + 0x34000
ST = 0x790000
X = 0x890000
OF = 0x1090000
PART = 0x1490000
ZP = 0x1690000
H = 0x16B0000
W1U = 0x24B0000
WS_END = 0x2630000
DBG = 0x2700000
```

```python
import re
from asmlib import Asm, weave
from layout import *
from prep import srd, onehot
import prep2

LB = 0x18000
TIMEOUT = 1 << 16
M32 = 'v_mfma_f32_32x32x16_bf16'
M16 = 'v_mfma_f32_16x16x32_bf16'
vL16, vLA, vLC, vL4 = 1, 2, 3, 4
XR = 128
SEL0, SEL1 = 248, 252
aKVW, aZW, aRSW, aRSV, aBP, aST4, aOUT, aOWN, aC4, aTW, aKVA, aZA, aZB = range(232, 245)
TOT = LB + 0x3000
ZERO = LB + 0x7000
ZPRIV = 0x3C00
sW, sR, sJ, sTB = 3, 16, 17, 18
sXB, sSTB, sW1, sW3, sW2, sW4, sL4K, sL16K = 20, 21, 22, 23, 24, 25, 26, 27
sTB2, sBLK2, sTB4, sBLK4, sTBA, sTBB = 28, 29, 30, 31, 32, 33
sD, sTO, sT0, sT1, sT2, sT3 = 40, 41, 42, 43, 46, 47
sHC, sHA, sHL0, sHL1, sD2, sD3 = 48, 49, 50, 51, 52, 53
RA = 120
sNO, sFL = 60, 61
sCB, sAV, sHC2, sP0 = 4, 19, 37, 54

def v(a, n=4): return f'v[{a}:{a+n-1}]'
def ag(a, n=4): return f'a[{a}:{a+n-1}]'

class Gen:
    def __init__(self, name, cfg):
        self.a = Asm(); self.name = name; self.cfg = cfg; self.nl = 0; self.nstamp = 0; self.names = []; self.pf = cfg.get('pollfl', 'sc1').replace('+', ' '); self.af = cfg.get('atomfl', 'sc1').replace('+', ' ').replace('none', '')
    def label(self, s):
        self.nl += 1; return f'L_{s}_{self.nl}'
    def stamp(self, name='x'):
        if not self.cfg.get('diag'): return
        if name.startswith('_') and not re.search(self.cfg.get('fine', '^$'), name): return
        if self.cfg.get('only') is not None and not name.endswith(str(self.cfg['only'])): return
        self.names.append(name)
        a = self.a; k = self.nstamp; self.nstamp += 1
        if k >= 38: self.names.pop(); self.nstamp -= 1; return
        a(f"{'s_memtime' if self.cfg.get('clk') else 's_memrealtime'} s[44:45]\ns_waitcnt lgkmcnt(0)\ns_mov_b32 s{62+k}, s44")
    def lds(self, off):
        base = (vL16, vLA, vLC)[off >> 16]
        return f'v{base} offset:{off & 0xffff}'
    def dma4(self, sl, lds_off, sg, g_off, tag):
        first = [f's_add_u32 m0, s{sl}, {lds_off}', f's_add_u32 s{sD}, s{sg}, {g_off}']
        g = []
        for k in range(4):
            ld = (f'buffer_load_dwordx4 v{vL16}, s[8:11], s{sD} offen offset:{1024*k} sc1 lds', tag)
            g.append((first if k == 0 else []) + [ld])
        return g
    def ld(self, dst, sbase, off, st, tag=None, va=vL16, sc=True):
        hi, lo = off & ~0xfff, off & 0xfff
        out = []
        if hi: out.append(f's_add_u32 s{st}, s{sbase}, {hi}'); s = st
        else: s = sbase
        out.append((f'buffer_load_dwordx4 {dst}, v{va}, s[8:11], s{s} offen offset:{lo}' + (' sc1' if sc else ''), tag))
        return out
    def peek(self, offs):
        o = []
        for k, so in enumerate(offs): o += [f's_mov_b32 s{sP0+k}, 0', f's_atomic_add s{sP0+k}, s[{sCB}:{sCB+1}], s{so} glc']
        return o
    def test(self, n, target, field=None):
        o = []
        for k in range(n):
            if field is not None: o.append(f's_bfe_u32 s{sP0+k}, s{sP0+k}, {(8 << 16) | (8 * field)}')
            o.append(f's_xor_b32 s{sP0+k}, s{sP0+k}, {target}')
            if k: o.append(f's_or_b32 s{sP0}, s{sP0}, s{sP0+k}')
        return o + [f's_cmp_eq_u32 s{sP0}, 0']
    def settle(self, offs, target, field=None):
        L = self.label('spin'); D = self.label('ok'); t = self.test(len(offs), target, field)
        return t + [f's_cbranch_scc1 {D}', f's_mov_b32 s{sTO}, {TIMEOUT}', f'{L}:'] + self.peek(offs) + ['s_waitcnt lgkmcnt(0) ; slow path'] + t + \
               [f's_cbranch_scc1 {D}', f's_sub_u32 s{sTO}, s{sTO}, 1', f's_cbranch_scc0 {L}', f'{D}:']
    def poll(self, offs, target):
        self.a.extend(self.peek(offs) + self.settle(offs, target))
    def arrive_l(self, so, val=1):
        return [f's_mov_b32 s{sAV}, {val}', f's_atomic_add s{sAV}, s[{sCB}:{sCB+1}], s{so}']
    def arrive(self, so, val=1):
        self.a.extend(self.arrive_l(so, val))
    def vpeek(self, mask):
        return ['v_mov_b32 v124, 0', f's_mov_b64 exec, {mask}', f'buffer_atomic_add v124, v125, s[8:11], s{sFL} offen sc0 sc1', 's_mov_b64 exec, -1']
    def vsettle(self, mask):
        L = self.label('spin'); D = self.label('ok'); t = [f'v_cmp_ne_u32 vcc, s{sNO}, v124']
        return [f's_mov_b64 exec, {mask}'] + t + [f's_cbranch_vccz {D}', f's_mov_b32 s{sTO}, {TIMEOUT}', f'{L}:', 'v_mov_b32 v124, 0', f'buffer_atomic_add v124, v125, s[8:11], s{sFL} offen sc0 sc1',
                    's_waitcnt vmcnt(0) ; vslow path', 's_nop 0'] + t + [f's_cbranch_vccz {D}', f's_sub_u32 s{sTO}, s{sTO}, 1', f's_cbranch_scc0 {L}', f'{D}:', 's_mov_b64 exec, -1']

    def init(self):
        a = self.a; n = self.name
        prep2.WS_SIZE[0] = WS_END if not self.cfg.get('diag') else DBG + 0x40000
        a(f'.globl {n}\n.p2align 8\n.type {n},@function\n{n}:')
        a('s_cmp_lt_u32 s2, 256\ns_cbranch_scc1 L_main_go\ns_endpgm\nL_main_go:')
        a('s_load_dwordx2 s[32:33], s[0:1], 80\ns_load_dwordx16 s[16:31], s[0:1], 0')
        if self.cfg.get('diag'): a('s_memrealtime s[56:57]')
        a(f'v_lshrrev_b32 v5, 6, v0\nv_readfirstlane_b32 s{sW}, v5')
        if self.cfg.get('codepf', 1):
            a(f's_getpc_b64 s[44:45]\nL_pc:\ns_lshr_b32 s4, s2, 3\ns_lshl_b32 s4, s4, 2\ns_add_u32 s4, s4, s{sW}\ns_min_u32 s4, s4, (L_code_end-L_pc)/1024-1\ns_lshl_b32 s4, s4, 10')
            a('s_add_u32 s44, s44, s4\ns_addc_u32 s45, s45, 0\ns_and_b32 s44, s44, -16\nv_and_b32 v12, 63, v0\nv_lshlrev_b32 v12, 4, v12\nv_mov_b32 v13, s45\nv_add_co_u32 v12, vcc, s44, v12\nv_addc_co_u32 v13, vcc, 0, v13, vcc')
            a('global_load_dwordx4 v[252:255], v[12:13], off')
        a(f's_waitcnt lgkmcnt(0)\ns_add_u32 s46, s32, {NW}\ns_addc_u32 s47, s33, 0\ns_load_dword s{sNO}, s[46:47], 0')
        a.forget()
        st = None
        if self.cfg.get('diag') and 'prep' in self.cfg.get('fine', ''):
            self.names.append('_prep.loaded0'); self.nstamp += 1
            st = 's_waitcnt vmcnt(0)\ns_memrealtime s[46:47]\ns_waitcnt lgkmcnt(0)\ns_mov_b32 s62, s46'
        prep2.emit_prep(a, 'L_prep_done', stamp=st)
        a('L_prep_done:'); a.forget()
        self.stamp('_prep.st0')
        a(f's_load_dwordx2 s[6:7], s[0:1], 64\ns_mov_b64 s[{sCB}:{sCB+1}], s[32:33]')
        a('v_and_b32 v6, 63, v0\nv_lshlrev_b32 v1, 4, v6')
        if self.cfg.get('map', 'B') == 'A':
            a(f's_and_b32 s{sT0}, s2, 7\ns_lshr_b32 s{sT1}, s2, 3\ns_lshr_b32 s{sR}, s{sT1}, 4\ns_lshl_b32 s{sT0}, s{sT0}, 1\ns_add_u32 s{sR}, s{sR}, s{sT0}\ns_and_b32 s{sJ}, s{sT1}, 15')
        else:
            a(f's_and_b32 s{sT0}, s2, 7\ns_lshr_b32 s{sT1}, s2, 3\ns_lshr_b32 s{sR}, s{sT1}, 3\ns_lshr_b32 s{sT2}, s{sT0}, 1\ns_lshl_b32 s{sT2}, s{sT2}, 2\ns_add_u32 s{sR}, s{sR}, s{sT2}')
            a(f's_and_b32 s{sJ}, s{sT1}, 7\ns_and_b32 s{sT0}, s{sT0}, 1\ns_lshl_b32 s{sT0}, s{sT0}, 3\ns_add_u32 s{sJ}, s{sJ}, s{sT0}')
        a(f's_lshl_b32 s{sL4K}, s{sW}, 12\ns_lshl_b32 s{sL16K}, s{sW}, 14')
        a(f's_mul_i32 s{sW1}, s{sJ}, {96*1024}\ns_add_u32 s{sW1}, s{sW1}, s{sL4K}')
        a(f's_lshl_b32 s{sTB}, s{sR}, 2\ns_add_u32 s{sTB}, s{sTB}, s{sW}\ns_lshl_b32 s{sXB}, s{sTB}, 15\ns_lshl_b32 s{sSTB}, s{sTB}, 12')
        a(f's_waitcnt lgkmcnt(0)\ns_add_u32 s{sNO}, s{sNO}, 1\ns_mov_b32 s{sFL}, {FL}')
        self.init2()
        a(f'v_and_b32 v6, 63, v0\nv_lshlrev_b32 v7, 4, v6\nv_add_u32 v7, s{sJ}, v7\ns_add_u32 s{sT0}, s{sTB}, 232\nv_mov_b32 v8, s{sT0}\nv_cmp_eq_u32 vcc, 3, v6\nv_cndmask_b32 v7, v7, v8, vcc\nv_lshlrev_b32 v7, 7, v7')
        a(f's_and_b32 s{sT0}, s{sBLK2}, 12\ns_add_u32 s{sT0}, s{sT0}, 216\ns_mul_i32 s{sT1}, s{sJ}, 7\ns_add_u32 s{sT1}, s{sT1}, 44\ns_lshr_b32 s{sT2}, s{sBLK4}, 1\ns_mul_i32 s{sT2}, s{sT2}, 7\ns_add_u32 s{sT2}, s{sT2}, 149')
        a(f'v_mov_b32 v8, s{sT0}\nv_mov_b32 v9, s{sT1}\nv_mov_b32 v10, s{sT2}\nv_cmp_lt_u32 vcc, 3, v6\nv_cndmask_b32 v8, v8, v9, vcc\nv_cmp_lt_u32 vcc, 10, v6\nv_cndmask_b32 v8, v8, v10, vcc')
        a(f'v_add_u32 v8, v8, v6\nv_lshlrev_b32 v125, 7, v8\nv_mov_b32 v8, 0\nv_mov_b32 v9, s{sNO}')
        a('s_waitcnt vmcnt(0)\ns_barrier')
        a(f's_cmp_lg_u32 s{sW}, 0\ns_cbranch_scc1 L_noflag\ns_mov_b64 exec, 1\nbuffer_store_dword v9, v8, s[8:11], s{prep2.SJOB} offen sc1\ns_mov_b64 exec, -1\nL_noflag:')
        a.forget()
        self.stamp('_prep.pub0')
        a(f'v_mov_b32 v8, v125\nv_mov_b32 v125, v7')
        a.extend(self.vpeek(15) + self.vsettle(15))
        a('v_mov_b32 v125, v8')
    def init2(self):
        a = self.a
        srd(a, 12, 6, 2048 * 512 * 2)
        a(f's_mul_i32 s{sW3}, s{sJ}, {224*1024}\ns_add_u32 s{sW3}, s{sW3}, {W3}')
        a(f's_and_b32 s{sT0}, s{sJ}, 3\ns_lshl_b32 s{sT0}, s{sT0}, 2\ns_add_u32 s{sBLK2}, s{sT0}, s{sW}\ns_lshl_b32 s{sW2}, s{sBLK2}, 15\ns_add_u32 s{sW2}, s{sW2}, {W2}')
        a(f's_lshr_b32 s{sT0}, s{sJ}, 2\ns_lshl_b32 s{sTB2}, s{sR}, 2\ns_add_u32 s{sTB2}, s{sTB2}, s{sT0}')
        a(f's_and_b32 s{sT0}, s{sJ}, 7\ns_lshl_b32 s{sT1}, s{sT0}, 2\ns_add_u32 s{sT1}, s{sT1}, s{sW}\ns_mul_i32 s{sW4}, s{sT1}, {56*1024}\ns_add_u32 s{sW4}, s{sW4}, {W4}')
        a(f's_lshl_b32 s{sT0}, s{sT0}, 1\ns_and_b32 s{sT1}, s{sW}, 1\ns_add_u32 s{sBLK4}, s{sT0}, s{sT1}')
        a(f's_lshr_b32 s{sT0}, s{sJ}, 3\ns_lshl_b32 s{sT0}, s{sT0}, 1\ns_lshl_b32 s{sT1}, s{sR}, 2\ns_add_u32 s{sT0}, s{sT0}, s{sT1}')
        a(f's_lshr_b32 s{sT1}, s{sW}, 1\ns_add_u32 s{sTB4}, s{sT0}, s{sT1}\ns_xor_b32 s{sT1}, s{sT1}, 1\ns_add_u32 s{sTBB}, s{sT0}, s{sT1}\ns_mov_b32 s{sTBA}, s{sTB4}')
        a(f'v_add_u32 v{vLA}, 0x10000, v1\nv_add_u32 v{vLC}, 0x20000, v1\nv_lshlrev_b32 v{vL4}, 2, v6')
        a('v_and_b32 v7, 31, v6\nv_lshrrev_b32 v8, 5, v6\nv_bfe_u32 v9, v6, 2, 1\nv_bfe_u32 v10, v6, 3, 1\nv_bfe_u32 v11, v6, 4, 1\nv_and_b32 v12, 3, v6')
        a('v_and_b32 v13, 15, v6\nv_lshrrev_b32 v14, 4, v6')
        a(f's_add_u32 s{sT0}, s{sL16K}, {LB}')
        def park(dst): a(f'v_accvgpr_write_b32 a{dst}, v15')
        a(f'v_lshlrev_b32 v15, 4, v7\nv_lshl_add_u32 v15, v8, 10, v15\nv_add_u32 v15, s{sT0}, v15'); park(aKVW)
        a(f'v_lshl_add_u32 v15, v10, 2, v12\nv_lshl_add_u32 v15, v9, 3, v15\nv_lshl_add_u32 v15, v8, 4, v15\nv_lshl_add_u32 v15, v11, 5, v15\nv_lshlrev_b32 v15, 2, v15\nv_add_u32 v15, s{sT0}, v15'); park(aZW)
        a(f'v_lshl_add_u32 v15, v13, 1, v8\nv_lshlrev_b32 v15, 2, v15\nv_add_u32 v15, s{sT0}, v15'); park(aRSW)
        a(f'v_lshlrev_b32 v15, 4, v8\nv_add_u32 v15, s{sT0}, v15'); park(aRSV)
        a('v_and_b32 v15, 1, v6\nv_lshlrev_b32 v15, 5, v15\nv_lshrrev_b32 v16, 1, v7\nv_add_u32 v15, v15, v16\nv_lshlrev_b32 v15, 2, v15'); park(aBP)
        a('v_lshl_add_u32 v15, v7, 1, v8\nv_lshlrev_b32 v15, 2, v15'); park(aST4)
        a('v_lshlrev_b32 v15, 10, v7\nv_lshl_add_u32 v15, v8, 4, v15'); park(aOUT)
        a(f'v_add_u32 v15, s{sT0}, v1'); park(aOWN)
        a('v_mov_b32 v15, v11'); park(aC4)
        a(f's_lshl_b32 s{sT1}, s{sW}, 9\ns_add_u32 s{sT1}, s{sT1}, {TOT}\nv_lshlrev_b32 v15, 4, v7\nv_lshl_add_u32 v15, v8, 3, v15\nv_add_u32 v15, s{sT1}, v15'); park(aTW)
        a(f'v_cmp_eq_u32 vcc, v9, v8\nv_lshrrev_b32 v16, 3, v7\nv_lshl_add_u32 v16, v16, 2, v12\nv_lshl_add_u32 v16, v8, 4, v16\nv_lshlrev_b32 v16, 4, v16\nv_add_u32 v16, {TOT}, v16')
        a(f'v_mov_b32 v17, {ZERO}\nv_cndmask_b32 v15, v17, v16, vcc'); park(aKVA)
        a(f'v_lshlrev_b32 v16, 6, v8\nv_add_u32 v16, s{sT0}, v16\nv_add_u32 v16, {ZPRIV}, v16\nv_cndmask_b32 v15, v17, v16, vcc'); park(aZA)
        a(f'v_lshl_add_u32 v15, v13, 2, v14\nv_lshlrev_b32 v15, 1, v15\nv_add_u32 v15, s{sT0}, v15\nv_add_u32 v15, {ZPRIV}, v15'); park(aZB)
        a('v_lshl_add_u32 v16, v10, 2, v12\nv_cmp_eq_u32 vcc, v11, v8\nv_cndmask_b32 v17, 0, 1, vcc\nv_and_b32 v18, v17, v9\nv_sub_u32 v17, v17, v18')
        onehot(a, 20, 16, 17, 28); onehot(a, 24, 16, 18, 28)
        for q in range(8): a(f'v_accvgpr_write_b32 a{SEL0+q}, v{20+q}')

    def stat_loads(self, xi):
        out = [f's_add_u32 s{sT0}, s{sSTB}, {ST + xi*0x40000}']
        for i in range(4): out.append(f'buffer_load_dwordx4 {v(96+4*i)}, v{vL16}, s[8:11], s{sT0} offen offset:{1024*i} sc1')
        return out
    def rstd(self):
        o = []
        for k in range(4): o += [f'v_add_f32 v{96+k}, v{96+k}, v{100+k}', f'v_add_f32 v{104+k}, v{104+k}, v{108+k}']
        for k in range(4): o += [f'v_add_f32 v{96+k}, v{96+k}, v{104+k}']
        o += ['v_permlane32_swap_b32 v96, v98', 'v_permlane32_swap_b32 v97, v99', 'v_add_f32 v96, v96, v98', 'v_add_f32 v97, v97, v99',
              'v_permlane16_swap_b32 v96, v97', 'v_add_f32 v96, v96, v97', 'v_mov_b32 v97, v96', 'v_permlane16_swap_b32 v96, v97',
              'v_mul_f32 v96, 0x3b000000, v96', 'v_mul_f32 v97, 0x3b000000, v97', 'v_fma_f32 v97, -v96, v96, v97',
              'v_max_f32 v97, 0, v97', 'v_add_f32 v97, 0x3727c5ac, v97', 'v_rsq_f32 v96, v97']
        return o
    def xload(self, xi, s):
        return self.ld(v(XR + 4 * s), sT3, 1024 * s, sT1)
    def features(self, p, en, dst, t):
        mx, mn = t, t + 1; sp, sn = t + 2, t + 4
        pr = lambda r: f'v[{r}:{r+1}]'
        o = [f'v_max3_f32 v{mx}, v{p}, v{p+1}, v{p+2}', f'v_min3_f32 v{mn}, v{p}, v{p+1}, v{p+2}']
        for k in range(3, 15, 2):
            o += [f'v_max3_f32 v{mx}, v{mx}, v{p+k}, v{p+k+1}', f'v_min3_f32 v{mn}, v{mn}, v{p+k}, v{p+k+1}']
        o += [f'v_max_f32 v{mx}, v{mx}, v{p+15}', f'v_min_f32 v{mn}, v{mn}, v{p+15}']
        o += [f'v_mul_f32 v{mx}, -v5, v{mx}', f'v_mul_f32 v{mn}, v5, v{mn}']
        for k in range(0, 16, 2):
            o += [f'v_pk_fma_f32 {pr(en+k)}, {pr(p+k)}, v[4:5], {pr(t)} op_sel:[0,1,1] op_sel_hi:[1,1,1] neg_lo:[0,1,0] neg_hi:[0,1,0]',
                  f'v_pk_fma_f32 {pr(p+k)}, {pr(p+k)}, v[4:5], {pr(t)} op_sel:[0,1,0] op_sel_hi:[1,1,0]']
            if k: o += [f'v_exp_f32 v{x}, v{x}' for x in (p + k - 2, p + k - 1, en + k - 2, en + k - 1)]
        o += [f'v_exp_f32 v{x}, v{x}' for x in (p + 14, p + 15, en + 14, en + 15)]
        o += [f'v_pk_add_f32 {pr(sp)}, {pr(p)}, {pr(p+2)}', f'v_pk_add_f32 {pr(sn)}, {pr(en)}, {pr(en+2)}']
        for k in range(4, 16, 2):
            o += [f'v_pk_add_f32 {pr(sp)}, {pr(sp)}, {pr(p+k)}', f'v_pk_add_f32 {pr(sn)}, {pr(sn)}, {pr(en+k)}']
        o += [f'v_add_f32 v{sp}, v{sp}, v{sp+1}', f'v_add_f32 v{sn}, v{sn}, v{sn+1}', f'v_rcp_f32 v{sp}, v{sp}', f'v_rcp_f32 v{sn}, v{sn}']
        groups = []
        for (src, sc, d) in ((p, sp, dst), (en, sn, dst + 8)):
            for g in range(2):
                q4 = range(4 * g, 4 * g + 4)
                groups.append([f'v_pk_mul_f32 {pr(src+2*q)}, {pr(src+2*q)}, {pr(sc)} op_sel_hi:[1,0]' for q in q4] +
                              [f'v_cvt_pk_bf16_f32 v{d+q}, v{src+2*q}, v{src+2*q+1}' for q in q4])
        return o, groups
    def unpack(self, src, dst, wr=None):
        o = []
        for q in range(8):
            o += [f'v_lshlrev_b32 v{dst(2*q)}, 16, v{src+q}', f'v_and_b32 v{dst(2*q+1)}, 0xffff0000, v{src+q}']
        return o

    def p1(self, l):
        a = self.a; xi = 2 * l; NX0 = 14; PD = 7
        aK, aV, aQ, WB = 16, 32, 48, 64
        def w1dma(q):
            g = self.dma4(sT2, 24576 * q, sD2, W1 + 24576 * q, f'w1_{q}')
            g2 = self.dma4(sT2, 24576 * q + 4096, sD2, W1 + 24576 * q + 4096, f'w1_{q}')[:2]
            return g + g2
        ins = {}
        def put(n, x): ins.setdefault(n, []).extend(x if isinstance(x, list) else [x])
        a(f's_add_u32 s{sT3}, s{sXB}, {X + xi*0x200000}')
        if l == 0:
            a(f's_mul_i32 s{sT2}, s{sW}, 6144\ns_mul_i32 s{sD2}, s{sJ}, {96*1024}\ns_add_u32 s{sD2}, s{sD2}, s{sT2}')
            self.stamp(f'p1.start{l}')
            a.extend(sum(w1dma(0), []))
            for s in range(8): a.extend(self.xload(xi, s))
            a.extend(sum(w1dma(1), []))
            seq = [self.xload(xi, s) for s in range(8, 16)] + [self.stat_loads(xi)]
            for q in (2, 3): seq += w1dma(q) + [self.xload(xi, s) for s in range(8 * q, 8 * q + 8)]
            for k, g in enumerate(seq): put(k + (k >> 1), g)
            for q in (1, 2, 3): put(24 * q - PD - 1, [('wait_tag', f'w1_{q}'), 's_barrier'])
            a.wait_tag('w1_0')
            n_rstd, n_w2 = 46, 62
            put(40, self.vpeek(0x3ffff)); put(60, self.vsettle(0x3ffff))
        else:
            a(f's_lshl_b32 s{sT0}, s{sTB}, 7\ns_add_u32 s{sT0}, s{sT0}, {X2C}')
            self.poll([sT0], 16)
            a.wait_tag('w1')
            self.stamp(f'p1.start{l}')
            for s in range(NX0): a.extend(self.xload(xi, s))
            for s in range(NX0, 32): put(3 * (s - NX0), self.xload(xi, s))
            put(4, self.stat_loads(xi))
            n_rstd, n_w2 = 36, 54
        a('s_barrier')
        rs = [f'v_accvgpr_read_b32 v7, a{aRSW}', f'v_accvgpr_read_b32 v9, a{aBP}'] + self.rstd() + [f'ds_write_b32 v7, v96 offset:{0x3000}', 'ds_bpermute_b32 v5, v9, v96',
              f'v_accvgpr_read_b32 v8, a{aRSV}']
        for k, x in enumerate(rs): put(n_rstd + k, x)
        put(n_rstd + len(rs) + 8, 'v_mul_f32 v5, 0x3fb8aa3b, v5')
        w2l = [self.ld(v(XR + 4 * s), sW2, 1024 * s, sT1) for s in range(32)]
        nw2 = 0
        for n in range(n_w2, 96, 3):
            assert 3 * nw2 + 2 <= n
            put(n, w2l[nw2]); nw2 += 1
        rd = lambda n: f'ds_read_b128 {v(WB + 4*(n%8))}, {self.lds(1024*n)}'
        for n in range(PD): a(rd(n))
        for n in range(96):
            s, T = divmod(n, 3); acc = (aK, aV, aQ)[T]; w = v(WB + 4 * (n % 8)); x = v(XR + 4 * s)
            c = v(acc, 16) if s else '0'
            a(f'{M32} {v(acc,16)}, {x}, {w}, {c}' if T == 1 else f'{M32} {v(acc,16)}, {w}, {x}, {c}')
            if n + PD < 96: a(rd(n + PD))
            a.extend(ins.get(n, []))
        self.stamp(f'p1.gemm{l}')
        a('s_barrier')
        a(f's_add_u32 s{sT2}, s{sW3}, s{sL4K}')
        pre = w2l[nw2:] + sum([self.dma4(sL4K, 16384 * b, sT2, 16384 * b, 'w3a') for b in range(6)], [])
        ev = self.cfg.get('pace1', 10)
        def paced(body, start=4, extra=()):
            ex = dict(extra)
            for k, x in enumerate(body):
                a.extend([x])
                if k in ex: a.extend([ex[k]])
                elif k >= start and (k - start) % ev == 0 and pre: a.extend(pre.pop(0))
        kf, kg = self.features(aK, 96, 64, 10)
        qf, qg = self.features(aQ, 96, 112, 10)
        for q in range(4): a(f'ds_read_b128 {v(112+4*q)}, v8 offset:{0x3000 + 32*q}')
        paced(kf + kg[0] + kg[2])
        self.stamp(f'_p1.kfeat{l}')
        a(f'{M32} {v(80,16)}, {v(64)}, {ag(SEL0)}, 0')
        a.extend(kg[1])
        a(f'{M32} {v(80,16)}, {v(68)}, {ag(SEL1)}, {v(80,16)}')
        a.extend(kg[3])
        a(f'{M32} {v(16,16)}, {v(72)}, {ag(SEL0)}, 0\n{M32} {v(16,16)}, {v(76)}, {ag(SEL1)}, {v(16,16)}')
        body = [f'v_pk_mul_f32 v[{aV+2*q}:{aV+2*q+1}], v[{aV+2*q}:{aV+2*q+1}], v[{112+2*q}:{113+2*q}]' for q in range(8)]
        body += [f'v_cvt_pk_bf16_f32 v{aV+q}, v{aV+2*q}, v{aV+2*q+1}' for q in range(8)]
        body += [f'v_cvt_pk_bf16_f32 v{64+q}, v{80+2*q}, v{81+2*q}' for q in range(8)]
        body += [f'{M32} {v(112,16)}, {v(64)}, {v(32)}, 0', f'{M32} {v(112,16)}, {v(68)}, {v(36)}, {v(112,16)}']
        body += [f'v_cvt_pk_bf16_f32 v{72+q}, v{16+2*q}, v{17+2*q}' for q in range(8)]
        body += [f'{M32} {v(96,16)}, {v(72)}, {v(32)}, 0', f'{M32} {v(96,16)}, {v(76)}, {v(36)}, {v(96,16)}']
        body += ['v_pk_add_f32 v[8:9], v[80:81], v[82:83]', 'v_pk_add_f32 v[40:41], v[16:17], v[18:19]']
        for k in range(4, 16, 2): body += [f'v_pk_add_f32 v[8:9], v[8:9], v[{80+k}:{81+k}]', f'v_pk_add_f32 v[40:41], v[40:41], v[{16+k}:{17+k}]']
        body += ['v_add_f32 v8, v8, v9', 'v_add_f32 v9, v40, v41', f'v_accvgpr_read_b32 v6, a{aZW}', f'v_accvgpr_read_b32 v7, a{aC4}']
        paced(body)
        a('v_permlane32_swap_b32 v8, v9\nv_cmp_ne_u32 vcc, 0, v7\nv_add_f32 v8, v8, v9')
        a(f'v_accvgpr_read_b32 v7, a{aKVW}\nds_write_b32 v6, v8 offset:4096')
        for i in range(8): a(f'v_cndmask_b32 v{16+i}, v{112+i}, v{120+i}, vcc')
        a(f'ds_write_b128 v7, {v(16)}\nds_write_b128 v7, {v(20)} offset:512')
        for i in range(8): a(f'v_cndmask_b32 v{24+i}, v{96+i}, v{104+i}, vcc')
        a(f'ds_write_b128 v7, {v(24)} offset:2048\nds_write_b128 v7, {v(28)} offset:2560')
        a(f's_lshl_b32 s{sT0}, s{sW}, 10\nv_add_u32 v6, s{sT0}, v{vL16}\nv_add_u32 v7, {LB}, v6\nv_add_u32 v8, {LB + 4096}, v{vL4}')
        a(f's_lshl_b32 s{sT0}, s{sJ}, 4\ns_add_u32 s{sT0}, s{sT0}, s{sR}\ns_lshl_b32 s{sD2}, s{sT0}, 8\ns_add_u32 s{sD2}, s{sD2}, {ZP + l*0x10000}\ns_lshl_b32 s{sT0}, s{sT0}, 12\ns_add_u32 s{sT0}, s{sT0}, {PART + l*0x100000}')
        a(f's_lshl_b32 s{sT1}, s{sW}, 4\ns_mov_b64 s[34:35], 0xffff\ns_lshl_b64 s[34:35], s[34:35], s{sT1}')
        a.extend(qf[:10])
        a.drain(lgkm=True)
        self.stamp(f'_p1.kvlds{l}')
        a('s_barrier')
        for w in range(4): a(f'ds_read_b128 {v(64+4*w)}, v7 offset:{16384*w}')
        a('ds_read2st64_b32 v[80:81], v8 offset0:0 offset1:64\nds_read2st64_b32 v[82:83], v8 offset0:128 offset1:192')
        a.extend(qf[10:22])
        a('v_pk_add_f32 v[64:65], v[64:65], v[68:69]\nv_pk_add_f32 v[66:67], v[66:67], v[70:71]\nv_pk_add_f32 v[72:73], v[72:73], v[76:77]\nv_pk_add_f32 v[74:75], v[74:75], v[78:79]')
        a('v_pk_add_f32 v[64:65], v[64:65], v[72:73]\nv_pk_add_f32 v[66:67], v[66:67], v[74:75]')
        a(f'buffer_store_dwordx4 {v(64)}, v6, s[8:11], s{sT0} offen sc1', 'pub')
        a('v_pk_add_f32 v[80:81], v[80:81], v[82:83]\nv_add_f32 v80, v80, v81\ns_mov_b64 exec, s[34:35]')
        a(f'buffer_store_dword v80, v{vL4}, s[8:11], s{sD2} offen sc1', 'pub')
        a('s_mov_b64 exec, -1')
        self.stamp(f'p1.partial{l}')
        paced(qf[22:] + sum(qg, []))
        a(f's_lshl_b32 s{sT0}, s{sW}, 4\ns_add_u32 s{sT0}, s{sT0}, s{sJ}\ns_lshl_b32 s{sT0}, s{sT0}, 7\ns_add_u32 s{sD2}, s{sT0}, {KVD + l*0x2000}')
        a.wait_tag('pub')
        a('s_barrier')
        self.arrive(sD2)
        self.stamp(f'p1.arrive{l}')
        npre = self.cfg.get('npre1', 4)
        for g in pre[:npre]: a.extend(g)
        self.pre = pre[npre:]
        a(f'v_mov_b32 v64, 0\nv_mov_b32 v65, 0\nv_mov_b32 v66, 0\nv_mov_b32 v67, 0\nds_write_b128 v{vLA}, {v(64)} offset:{ZERO - 0x10000}\nds_write_b128 v{vLA}, {v(64)} offset:{ZERO - 0x10000 + 1024}')
        a(f's_lshl_b32 s{sT0}, s{sJ}, 16\ns_lshl_b32 s{sT1}, s{sW}, 10\ns_add_u32 s{sT0}, s{sT0}, s{sT1}\ns_add_u32 s{sT3}, s{sT0}, {PART + l*0x100000}')
        a(f's_lshl_b32 s{sT0}, s{sJ}, 12\ns_add_u32 s{sT0}, s{sT0}, {ZP + l*0x10000}')
        self.poll([sD2], 16)
        self.stamp(f'o.flag{l}')
        for k in range(4): a(f'buffer_load_dwordx4 {v(16+4*k)}, v{vL16}, s[8:11], s{sT0} offen offset:{1024*k} sc1')
        for r in range(16): a.extend(self.ld(v(32 + 4 * r), sT3, 4096 * r, sT1))
        a(f'v_accvgpr_read_b32 v8, a{aZB}\nv_accvgpr_read_b32 v9, a{aTW}\nv_accvgpr_read_b32 v10, a{aZA}\nv_accvgpr_read_b32 v11, a{aKVA}')
        a('v_pk_add_f32 v[16:17], v[16:17], v[20:21]\nv_pk_add_f32 v[18:19], v[18:19], v[22:23]\nv_pk_add_f32 v[24:25], v[24:25], v[28:29]\nv_pk_add_f32 v[26:27], v[26:27], v[30:31]')
        a('v_pk_add_f32 v[16:17], v[16:17], v[24:25]\nv_pk_add_f32 v[18:19], v[18:19], v[26:27]')
        a('v_permlane32_swap_b32 v16, v18\nv_permlane32_swap_b32 v17, v19\nv_add_f32 v16, v16, v18\nv_add_f32 v17, v17, v19')
        a('v_permlane16_swap_b32 v16, v17\nv_add_f32 v16, v16, v17\nv_cvt_pk_bf16_f32 v16, v16, v16\nds_write_b16 v8, v16')
        for r in range(1, 16):
            a(f'v_pk_add_f32 v[32:33], v[32:33], v[{32+4*r}:{33+4*r}]\nv_pk_add_f32 v[34:35], v[34:35], v[{34+4*r}:{35+4*r}]')
        a('v_cvt_pk_bf16_f32 v32, v32, v33\nv_cvt_pk_bf16_f32 v33, v34, v35\nds_write_b64 v9, v[32:33]')
        a.drain(lgkm=True)
        a('s_barrier')
        self.stamp(f'_o.tot{l}')
        ZSTEP = 16
        for g in range(4): a(f'ds_read_b128 {v(64+4*g)}, v10 offset:{ZSTEP*g}')
        for g in range(4): a(f'ds_read_b128 {v(80+4*g)}, v11 offset:{512*g}')
        a(f's_lshl_b32 s{sT0}, s{sJ}, 11\ns_add_u32 s{sT0}, s{sT0}, s{sXB}\ns_add_u32 s{sT0}, s{sT0}, {OF + l*0x200000}')
        a(f's_lshl_b32 s{sT1}, s{sTB}, 2\ns_lshr_b32 s{sD2}, s{sJ}, 2\ns_add_u32 s{sD2}, s{sD2}, s{sT1}\ns_lshl_b32 s{sD2}, s{sD2}, 7\ns_add_u32 s{sD2}, s{sD2}, {OC + l*0x8000}')
        for g in range(4): a(f'{M32} {v(32,16)}, {v(64+4*g)}, {v(112+4*g)}, {v(32,16) if g else "0"}')
        for g in range(4): a(f'{M32} {v(16,16)}, {v(80+4*g)}, {v(112+4*g)}, {v(16,16) if g else "0"}')
        a('v_add_f32 v32, 0x358637bd, v32\nv_rcp_f32 v32, v32')
        for u in range(2):
            for q in range(4): a(f'v_pk_mul_f32 v[{16+8*u+2*q}:{17+8*u+2*q}], v[{16+8*u+2*q}:{17+8*u+2*q}], v[32:33] op_sel_hi:[1,0]')
            for q in range(4): a(f'v_cvt_pk_bf16_f32 v{40+4*u+q}, v{16+8*u+2*q}, v{17+8*u+2*q}')
            a(f'buffer_store_dwordx4 {v(40+4*u)}, v{vL16}, s[8:11], s{sT0} offen offset:{1024*u} sc1', 'pub')
        self.stamp(f'_o.st{l}')
        a(f's_lshl_b32 s{sT0}, s{sTB2}, 15\ns_lshl_b32 s{sT1}, s{sBLK2}, 11\ns_add_u32 s{sT0}, s{sT0}, s{sT1}\ns_add_u32 s{sT0}, s{sT0}, {X + xi*0x200000}')
        a(f'buffer_load_dwordx4 {v(8)}, v{vL16}, s[8:11], s{sT0} offen sc1\nbuffer_load_dwordx4 {v(12)}, v{vL16}, s[8:11], s{sT0} offen offset:1024 sc1')
        npre = self.cfg.get('npre2', 10)
        for g in self.pre[:npre]: a.extend(g)
        a.wait_tag('pub')
        self.arrive(sD2)
        self.stamp(f'o.arrive{l}')
        for g in self.pre[npre:]: a.extend(g)
        self.npost1 = len(self.pre[npre:])
        a.extend(self.unpack(8, lambda k: 16 + k))

    def red_addr(self, owner_fn):
        a = self.a
        for q in range(1, 4):
            owner_fn(q)
            a(f's_lshl_b32 s{sT0}, s{sT0}, 14\ns_add_u32 s{sT0}, s{sT0}, {LB + (q-1)*4096}\nv_add_u32 v{RA+q-1}, s{sT0}, v{vL16}')
    def red_write(self, q, u, src): return f'ds_write_b128 v{RA+q-1}, {src} offset:{1024*u}'
    def red_finish(self, own):
        a = self.a
        a(f'v_accvgpr_read_b32 v5, a{aOWN}')
        a.drain(lgkm=True)
        a('s_barrier')
        for q in range(3):
            for u in range(4): a(f'ds_read_b128 {v(80 + 16*q + 4*u)}, v5 offset:{4096*q + 1024*u}')
        for q in range(3):
            for k in range(0, 16, 2): a(f'v_pk_add_f32 v[{own+k}:{own+k+1}], v[{own+k}:{own+k+1}], v[{80+16*q+k}:{81+16*q+k}]')
    def tile_out(self, sx, sst, vaddr, srd_, off2, sc):
        a = self.a
        for u in range(2):
            for q in range(4): a(f'v_cvt_pk_bf16_f32 v{32+4*u+q}, v{16+8*u+2*q}, v{17+8*u+2*q}')
            a(f'buffer_store_dwordx4 {v(32+4*u)}, v{vaddr}, s[{srd_}:{srd_+3}], s{sx} offen offset:{off2*u}{sc}', 'pub')
        if sst is not None:
            a('v_pk_add_f32 v[40:41], v[16:17], v[18:19]\nv_pk_mul_f32 v[42:43], v[16:17], v[16:17]\nv_pk_fma_f32 v[42:43], v[18:19], v[18:19], v[42:43]')
            for k in range(4, 16, 2): a(f'v_pk_add_f32 v[40:41], v[40:41], v[{16+k}:{17+k}]\nv_pk_fma_f32 v[42:43], v[{16+k}:{17+k}], v[{16+k}:{17+k}], v[42:43]')
            a('v_add_f32 v40, v40, v41\nv_add_f32 v41, v42, v43\nv_permlane32_swap_b32 v40, v41\nv_add_f32 v40, v40, v41')
            a(f'buffer_store_dword v40, v6, s[8:11], s{sst} offen sc1', 'pub')
    def tile_addr(self, tb, blk, xi):
        self.a(f's_lshl_b32 s{sT0}, s{tb}, 15\ns_lshl_b32 s{sT1}, s{blk}, 11\ns_add_u32 s{sT0}, s{sT0}, s{sT1}\ns_add_u32 s{sT0}, s{sT0}, {X + xi*0x200000}')
        self.a(f'v_accvgpr_read_b32 v6, a{aST4}\ns_lshl_b32 s{sT2}, s{tb}, 12\ns_lshl_b32 s{sT1}, s{blk}, 8\ns_add_u32 s{sT2}, s{sT2}, s{sT1}\ns_add_u32 s{sT2}, s{sT2}, {ST + xi*0x40000}')
    def p2(self, l):
        a = self.a; xi = 2 * l
        self.red_addr(lambda q: a(f's_xor_b32 s{sT0}, s{sW}, {q}'))
        a(f's_lshl_b32 s{sT0}, s{sTB2}, 2\ns_add_u32 s{sT0}, s{sT0}, s{sW}\ns_lshl_b32 s{sT0}, s{sT0}, 7\ns_add_u32 s{sD2}, s{sT0}, {OC + l*0x8000}')
        a(f's_lshl_b32 s{sT3}, s{sTB2}, 15\ns_lshl_b32 s{sT1}, s{sW}, 13\ns_add_u32 s{sT3}, s{sT3}, s{sT1}\ns_add_u32 s{sT3}, s{sT3}, {OF + l*0x200000}')
        self.poll([sD2], 4)
        self.stamp(f'p2.flag{l}')
        for s in range(8): a.extend(self.ld(v(80 + 4 * s), sT3, 1024 * s, sT1))
        w4 = [self.ld(ag(4 * e), sW4, 1024 * e, sT1) for e in range(56)] if l == 0 else []
        nw4 = self.cfg.get('nw4p2', 20)
        pf = w4[56 - nw4:]; self.left = w4[:56 - nw4]
        self.tile_addr(sTB2, sBLK2, xi + 1)
        seq = [(s, q) for s in range(4) for q in range(4)] + [(s, q) for q in (1, 2, 3, 0) for s in range(4, 8)]
        ins = {}
        def put(n, x): ins.setdefault(n, []).extend(x if isinstance(x, list) else [x])
        for k in range(8): put(23 + k, self.red_write(1 + k // 4, k % 4, v(32 + 4 * k)))
        for k, g in enumerate(pf[:12]): put(2 * k + 1, g)
        for n, (s, q) in enumerate(seq):
            ac = v(16 + 16 * q, 16)
            a(f'{M32} {ac}, {v(XR + 16*s + 4*q)}, {v(80 + 4*s)}, {ac if (s or q == 0) else "0"}')
            a.extend(ins.get(n, []))
        a.extend(weave([[self.red_write(3, u, v(64 + 4 * u))] for u in range(4)], pf[12:16]))
        self.stamp(f'p2.mfma{l}')
        a.wait_tag('w3a')
        self.red_finish(16)
        self.tile_out(sT0, sT2, vL16, 8, 1024, ' sc1')
        a(f's_lshl_b32 s{sD3}, s{sW}, 13\ns_add_u32 s{sD3}, s{sD3}, s{sW3}')
        post = sum([self.dma4(sL16K, LB + 4096 * b, sD3, LB + 32768 * (b >> 1) + 4096 * (b & 1), f'w3b{b >> 1}') for b in range(4)], [])
        for g in post[:8]: a.extend(g)
        a(f's_lshl_b32 s{sT0}, s{sTB2}, 7\ns_add_u32 s{sT0}, s{sT0}, {X1C + l*0x2000}')
        a.wait_tag('pub')
        self.arrive(sT0)
        self.stamp(f'p2.arrive{l}')
        for g in pf[16:]: a.extend(g)
        npost = self.cfg.get('npost2', 8)
        for g in post[8:npost]: a.extend(g)
        self.left34 = post[npost:]

    def hreg(self, e): return XR + 4 * e if e < 32 else (80 + 4 * (e - 32) if e < 44 else XR + 4 * (e - 44))
    def hslot(self, k):
        if k < 40: return k >> 1, k & 1
        return (20 + k - 40, 1) if k < 48 else (20 + k - 48, 0)
    def hl(self, k):
        idx, b = self.hslot(k); i, jj = idx >> 2, idx & 3
        return self.ld(v(self.hreg(k)), (sHL0, sHL1)[b], 1024 * (7 * jj + i), sT1)
    def p3(self, l):
        a = self.a; xi = 2 * l + 1; NX0 = 14; WB = 64; PD = 7
        a(f's_lshl_b32 s{sT0}, s{sTB}, 7\ns_add_u32 s{sD2}, s{sT0}, {X1C + l*0x2000}')
        a(f's_add_u32 s{sT3}, s{sXB}, {X + xi*0x200000}')
        a(f's_mul_i32 s{sT0}, s{sTB}, 112\ns_mul_i32 s{sT2}, s{sJ}, 7\ns_add_u32 s{sT0}, s{sT0}, s{sT2}\ns_lshl_b32 s{sT0}, s{sT0}, 10\ns_add_u32 s34, s{sT0}, {H + l*0x700000}\ns_add_u32 s35, s34, 4096')
        a(f's_lshl_b32 s{sT0}, s{sTB}, 2\ns_lshr_b32 s{sT1}, s{sJ}, 2\ns_add_u32 s{sT0}, s{sT0}, s{sT1}\ns_lshl_b32 s{sT0}, s{sT0}, 7\ns_add_u32 s{sHA}, s{sT0}, {HC + l*0x8000}')
        a(f's_and_b32 s{sT0}, s{sTB4}, -2\ns_lshl_b32 s{sT0}, s{sT0}, 2\ns_add_u32 s{sT0}, s{sT0}, s{sW}\ns_lshl_b32 s{sT0}, s{sT0}, 7\ns_add_u32 s{sHC}, s{sT0}, {HC + l*0x8000}')
        a(f's_add_u32 s{sHC2}, s{sHC}, 512')
        for (sb, tb) in ((sHL0, sTBA), (sHL1, sTBB)):
            a(f's_mul_i32 s{sb}, s{tb}, 112\ns_mul_i32 s{sT1}, s{sW}, 28\ns_add_u32 s{sb}, s{sb}, s{sT1}\ns_lshl_b32 s{sb}, s{sb}, 10\ns_add_u32 s{sb}, s{sb}, {H + l*0x700000}')
        a(f's_lshl_b32 s36, s{sTB4}, 15\ns_lshl_b32 s{sT1}, s{sBLK4}, 11\ns_add_u32 s36, s36, s{sT1}\ns_add_u32 s36, s36, {X + xi*0x200000}')
        a(f's_add_u32 s{sT2}, s{sW3}, s{sL4K}')
        acc = [16, 32, 48, 104, 16, 32, 104]
        order = [(i, s) for s in range(32) for i in range(3)] + [(i, s) for i in range(3, 7) for s in range(32)]
        def where(i, s):
            if i < 3: return 32768 * i + 1024 * s
            if i < 5: return LB + 16384 * (s >> 3) + 8192 * (i - 3) + 1024 * (s & 7)
            if i == 5: return 32768 * (s >> 4) + 1024 * (s & 15)
            return 65536 + 1024 * s if s < 16 else 1024 * s
        rd = lambda n: f'ds_read_b128 {v(WB + 4*(n%8))}, {self.lds(where(*order[n]))}'
        for n in range(PD): a(rd(n))
        self.poll([sD2], 16)
        self.stamp(f'p3.flag{l}')
        for s in range(NX0): a.extend(self.xload(xi, s))
        def epi(i):
            b = acc[i]; d = 96 + 4 * (i % 2); o = []
            for q in range(4):
                for k in (2 * q, 2 * q + 1):
                    o += [f'v_mul_f32 v{b+k}, v{b+k}, v5', f'v_mul_f32 v{b+k}, v{b+k}, v{b+8+k}']
                o.append(f'v_cvt_pk_bf16_f32 v{d+q}, v{b+2*q}, v{b+2*q+1}')
            if 'hs' not in self.cfg.get('drop', ''): o.append((f'buffer_store_dwordx4 {v(d)}, v{vL16}, s[8:11], s{34 if i < 4 else 35} offen offset:{1024*(i%4)} sc1', f'h{i}'))
            if 'ep' in self.cfg.get('drop', ''): o = o[-1:]
            return o
        c = self.cfg
        ins = {}
        def put(n, x): ins.setdefault(n, []).extend(x if isinstance(x, list) else [x])
        for s in range(NX0, 32): put(3 * (s - NX0), self.xload(xi, s))
        put(4, self.stat_loads(xi))
        rs = [f'v_accvgpr_read_b32 v9, a{aBP}'] + self.rstd() + ['ds_bpermute_b32 v5, v9, v96']
        for k, x in enumerate(rs): put(36 + k, x)
        put(36 + len(rs) + 8, 'v_mul_f32 v5, v5, v5')
        S5 = 5 * 32768
        dA = self.dma4(sL4K, 0, sT2, S5, 'w3c') + self.dma4(sL4K, 32768, sT2, S5 + 16384, 'w3c') + self.dma4(sL4K, 65536, sT2, S5 + 32768, 'w3c')
        dB = self.dma4(sL4K, 16384, sT2, S5 + 49152, 'w3d')
        res = [[f'buffer_load_dwordx4 {v(8)}, v{vL16}, s[8:11], s36 offen sc1'], [f'buffer_load_dwordx4 {v(12)}, v{vL16}, s[8:11], s36 offen offset:1024 sc1']]
        put(48, [('wait_tag', 'w3b0'), 's_barrier'])
        step = c.get('step3', 25) / 10.0
        pos = 54.0
        for g in self.left34 + dA + res: put(int(pos), g); pos += 2.0
        assert not self.left34 or 54 + 2 * len(self.left34) < 80
        put(101, [('wait_tag', 'w3b1'), 's_barrier'])
        for k, g in enumerate(dB): put(102 + k, g)
        pos = max(pos, 108.0)
        for g in self.left: put(int(pos), g); pos += step
        self.w4_end = pos
        put(151, [('wait_tag', 'w3d'), 's_barrier'])
        ep = epi(0) + epi(1) + epi(2)
        for k, x in enumerate(ep): put(98 + k // 3 + (4 if k >= 12 else 0), x)
        for i in range(3, 7):
            for k, x in enumerate(epi(i)): put(96 + 32 * (i - 2) + 3 + k // 2, x)
        for k, x in enumerate(self.unpack(8, lambda k: 16 + k)): put(192 + k, x)
        last = [2, 4, 6]; first_k = [0, 24, 40, 56]
        arr = [c.get('arrA', 172), c.get('arrB', 226), c.get('arrC', 270)]
        chk = [c.get('chkA', 188), c.get('chkB', 240), c.get('chkC', 284)]
        use = [c.get('useA', 204), c.get('useB', 254), c.get('useC', 298)]
        pace = [2, 2, 1]
        seq = [(idx, b) for idx in range(20) for b in range(2)] + [(idx, 1) for idx in range(20, 28)] + [(idx, 0) for idx in range(20, 28)]
        for g in range(3):
            put(arr[g], [('wait_tag', f'h{last[g]}')] + self.arrive_l(sHA, 1 << (8 * g)))
            put(chk[g], self.peek([sHC, sHC2]))
            put(use[g], self.settle([sHC, sHC2], 4, g))
            for k in range(first_k[g], first_k[g + 1]):
                n = use[g] + pace[g] * (k - first_k[g])
                need = 224 + 2 * seq.index(self.hslot(k))
                n = min(n, need - 1)
                assert n >= use[g] and (k >= 32 or n >= 192 + k)
                put(n, self.hl(k))
        put(223, ['s_barrier'])
        self.extra = []
        if l == 0:
            for b in range(6): self.extra += self.dma4(sL4K, 16384 * b, sW1, W1 + 16384 * b, 'w1')
            nin = c.get('w1in', 10)
            for k, g in enumerate(self.extra[:nin]): put(min(use[2] + 17 + 2 * k, 335), g)
            self.extra = self.extra[nin:]
        self.a = tmp = Asm(); self.red_addr(lambda q: tmp(f's_xor_b32 s{sT0}, s{sW}, {q}')); self.a = a
        for k, x in enumerate(tmp.items): put(224 + 90 + k // 2, [x])
        for k in range(8): put(224 + 99 + k, self.red_write(2 + k // 4, k % 4, v(48 + 4 * k)))
        reg = {self.hslot(k): self.hreg(k) for k in range(56)}
        for n, (i, s) in enumerate(order):
            cc = v(acc[i], 16) if s else '0'
            a(f'{M32} {v(acc[i],16)}, {v(WB + 4*(n%8))}, {v(XR+4*s)}, {cc}')
            if n + PD < len(order): a(rd(n + PD))
            a.extend(ins.get(n, []))
            if n in (0, 47, 95, 127, 159, 191): self.stamp(f'_p3.n{n}.{l}')
        self.stamp(f'p3.mfma{l}')
        n = 224
        for (idx, b) in seq:
            for t in range(2):
                q = t + 2 * b; ac = v(16 + 16 * q, 16)
                a(f'{M32} {ac}, {ag(8*idx + 4*t)}, {v(reg[(idx, b)])}, {ac if (idx or q == 0) else "0"}')
                a.extend(ins.get(n, []))
                if (n - 224) % 16 == 15: self.stamp(f'_p4.n{n}.{l}')
                n += 1

    def p4(self, l):
        a = self.a; extra = self.extra
        self.stamp(f'p4.mfma{l}')
        if l == 0: self.tile_addr(sTB4, sBLK4, 2)
        else: a(f'v_accvgpr_read_b32 v7, a{aOUT}\ns_lshl_b32 s{sT0}, s{sTB4}, 15\ns_lshl_b32 s{sT1}, s{sBLK4}, 6\ns_add_u32 s{sT0}, s{sT0}, s{sT1}')
        for u in range(4): a(self.red_write(1, u, v(32 + 4 * u)))
        self.red_finish(16)
        if l == 0:
            self.tile_out(sT0, sT2, vL16, 8, 1024, ' sc1')
            for g in extra: a.extend(g)
            a(f's_lshl_b32 s{sT0}, s{sTB4}, 7\ns_add_u32 s{sT0}, s{sT0}, {X2C}')
            a.wait_tag('pub')
            self.arrive(sT0)
        else:
            self.tile_out(sT0, None, 7, 12, 32, '')
        self.stamp(f'p4.end{l}')

    def finish(self):
        a = self.a
        if self.cfg.get('diag'):
            a('s_memrealtime s[58:59]\ns_waitcnt vmcnt(0) lgkmcnt(0)')
            a(f's_lshl_b32 s{sT0}, s2, 2\ns_add_u32 s{sT0}, s{sT0}, s{sW}\ns_lshl_b32 s{sT0}, s{sT0}, 8\ns_add_u32 s{sT0}, s{sT0}, {DBG}\nv_mov_b32 v6, 0\ns_mov_b64 exec, 1')
            vals = [56, 58] + [62 + k for k in range(self.nstamp)]
            for k, s in enumerate(vals):
                a(f'v_mov_b32 v7, s{s}\nbuffer_store_dword v7, v6, s[8:11], s{sT0} offen offset:{4*k}')
        a(f's_or_b32 s{sT0}, s2, s{sW}\ns_cmp_lg_u32 s{sT0}, 0\ns_cbranch_scc1 L_exit\ns_mov_b32 s{sT0}, {NW}\nv_mov_b32 v8, 0\nv_mov_b32 v9, s{sNO}\ns_mov_b64 exec, 1')
        a(f'buffer_store_dword v9, v8, s[8:11], s{sT0} offen sc1\nL_exit:\ns_endpgm\nL_code_end:')
        return a.finish()

def gen_main(name, cfg):
    g = Gen(name, cfg)
    g.init()
    stop = cfg.get('stop', 99); n = 0
    for l in range(2):
        for ph in (g.p1, g.p2, g.p3, g.p4):
            g.l = l
            if n < stop: ph(l)
            n += 1
    txt = g.finish()
    return txt, g
```

```python
from asmlib import Asm
from layout import *

NJOBS = 296
def srd(a, d, lo, size):
    a(f's_mov_b32 s{d}, s{lo}\ns_and_b32 s{d+1}, s{lo+1}, 0xffff\ns_mov_b32 s{d+2}, {size}\ns_mov_b32 s{d+3}, 0x20000')

def bit(a, dst, src, b):
    a(f'v_bfe_u32 v{dst}, v{src}, {b}, 1')

def onehot(a, dst, vi, vcond, tmp):
    a(f'v_and_b32 v{tmp}, 1, v{vi}\nv_lshlrev_b32 v{tmp}, 4, v{tmp}\nv_mov_b32 v{tmp+1}, 0x3f80\nv_lshlrev_b32 v{tmp}, v{tmp}, v{tmp+1}')
    a(f'v_cmp_ne_u32 vcc, 0, v{vcond}\nv_cndmask_b32 v{tmp}, 0, v{tmp}, vcc\nv_lshrrev_b32 v{tmp+1}, 1, v{vi}')
    for q in range(4):
        a(f'v_cmp_eq_u32 vcc, {q}, v{tmp+1}\nv_cndmask_b32 v{dst+q}, 0, v{tmp}, vcc')

def gen_prep(name):
    a = Asm()
    a(f'.globl {name}\n.p2align 8\n.type {name},@function\n{name}:')
    a(f's_cmp_ge_u32 s2, {NJOBS}\ns_cbranch_scc1 L_prep_end')
    a('s_load_dwordx16 s[16:31], s[0:1], 0\ns_load_dwordx2 s[32:33], s[0:1], 80')
    a('v_and_b32 v1, 63, v0\nv_lshrrev_b32 v10, 6, v0\nv_and_b32 v2, 31, v1\nv_lshrrev_b32 v3, 5, v1')
    a('v_readfirstlane_b32 s3, v10')
    bit(a, 4, 2, 2); bit(a, 5, 2, 3); bit(a, 6, 2, 4)
    a('v_and_b32 v7, 3, v2\nv_lshlrev_b32 v9, 4, v1')
    a('s_waitcnt lgkmcnt(0)')
    srd(a, 8, 32, WS_END)
    a(f's_cmp_lg_u32 s3, 0\ns_cbranch_scc1 L_prep_nz\ns_cmp_ge_u32 s2, {ZR_KB}\ns_cbranch_scc1 L_prep_nz')
    a(f'v_mov_b32 v12, 0\nv_mov_b32 v13, 0\nv_mov_b32 v14, 0\nv_mov_b32 v15, 0\ns_lshl_b32 s4, s2, 10\ns_add_u32 s4, s4, {ZR}')
    a('buffer_store_dwordx4 v[12:15], v9, s[8:11], s4 offen')
    a.drain(vm=True)
    a('L_prep_nz:')
    a('s_cmp_lt_u32 s2, 48\ns_cbranch_scc1 L_prep_w1\ns_cmp_lt_u32 s2, 160\ns_cbranch_scc1 L_prep_gu')
    a('s_cmp_lt_u32 s2, 216\ns_cbranch_scc1 L_prep_wd\ns_cmp_lt_u32 s2, 232\ns_cbranch_scc1 L_prep_wo\ns_branch L_prep_x')

    def rowmap(kind, stride):
        if kind == 'std':
            a('v_lshlrev_b32 v11, 4, v6\nv_lshl_add_u32 v11, v4, 3, v11\nv_lshl_add_u32 v11, v5, 2, v11\nv_add_u32 v11, v11, v7')
        else:
            a('v_lshlrev_b32 v11, 4, v4\nv_lshl_add_u32 v11, v6, 3, v11\nv_lshl_add_u32 v11, v5, 2, v11\nv_add_u32 v11, v11, v7')
        a(f'v_mul_u32_u24 v11, {stride}, v11\nv_lshl_add_u32 v11, v3, 4, v11')

    def loads(srd1, srd2, off2, stride):
        for m in range(4):
            a(f'buffer_load_dwordx4 v[{64+8*m}:{67+8*m}], v11, s[{srd1}:{srd1+3}], s4 offen')
            a(f'buffer_load_dwordx4 v[{68+8*m}:{71+8*m}], v11, s[{srd2}:{srd2+3}], s4 offen offset:{off2}')
            if m < 3: a(f's_add_u32 s4, s4, {32*stride}')

    def sel(vcond_hi_eq, vhalf, vi4):
        a(f'v_lshl_add_u32 v12, v{vi4}, 2, v7')
        a(f'v_cmp_eq_u32 vcc, v3, v{vcond_hi_eq}\nv_cndmask_b32 v13, 0, 1, vcc')
        a(f'v_and_b32 v14, v13, v{vhalf}\nv_sub_u32 v13, v13, v14')
        onehot(a, 16, 12, 13, 24); onehot(a, 20, 12, 14, 24)

    def mfmas():
        for m in range(4):
            d = 96 + 16 * m
            a(f'v_mfma_f32_32x32x16_bf16 v[{d}:{d+15}], v[{64+8*m}:{67+8*m}], v[16:19], 0')
            a(f'v_mfma_f32_32x32x16_bf16 v[{d}:{d+15}], v[{68+8*m}:{71+8*m}], v[20:23], v[{d}:{d+15}]')

    def center():
        a('v_add_f32 v24, v96, v97\nv_add_f32 v25, v98, v99')
        for i in range(100, 160, 2):
            a(f'v_add_f32 v24, v24, v{i}\nv_add_f32 v25, v25, v{i+1}')
        a('v_add_f32 v24, v24, v25\nv_mov_b32 v25, v24\nv_permlane32_swap_b32 v24, v25\nv_add_f32 v24, v24, v25')
        a('s_lshl_b32 s5, s3, 8\nv_lshlrev_b32 v26, 2, v1\nv_add_u32 v27, s5, v26\nds_write_b32 v27, v24')
        a.drain(lgkm=True)
        a('s_barrier')
        for w in range(4): a(f'ds_read_b32 v{28+w}, v26 offset:{256*w}')
        a('v_add_f32 v28, v28, v29\nv_add_f32 v30, v30, v31\nv_add_f32 v28, v28, v30\nv_mul_f32 v28, 0x3b000000, v28')
        for i in range(96, 160): a(f'v_sub_f32 v{i}, v{i}, v28')

    def pack_store(vaddr, soff_fn, imm_fn=lambda m, u: 0):
        for m in range(4):
            for u in range(2):
                s = 96 + 16 * m + 8 * u; d = 32 + 4 * (2 * m + u)
                for q in range(4): a(f'v_cvt_pk_bf16_f32 v{d+q}, v{s+2*q}, v{s+2*q+1}')
                soff_fn(m, u)
                a(f'buffer_store_dwordx4 v[{d}:{d+3}], v{vaddr}, s[8:11], s6 offen offset:{imm_fn(m, u)}')
        a('s_endpgm')

    a('L_prep_w1:')
    srd(a, 12, 18, 512 * 1536 * 2)
    rowmap('std', 3072)
    a('s_and_b32 s34, s2, 15\ns_lshr_b32 s35, s2, 4')
    a('s_add_u32 s5, s35, 1\ns_cmp_eq_u32 s35, 2\ns_cselect_b32 s5, 0, s5')
    a(f's_lshl_b32 s5, s5, 10\ns_lshl_b32 s4, s34, 6\ns_add_u32 s4, s4, s5\ns_mul_i32 s5, s3, {128*3072}\ns_add_u32 s4, s4, s5')
    loads(12, 12, 32, 3072)
    a('s_cmp_eq_u32 s35, 1\ns_cbranch_scc1 L_prep_v')
    srd(a, 36, 20, 32 * 16 * 16 * 2)
    a('v_lshl_add_u32 v12, v5, 2, v7\nv_lshl_add_u32 v12, v6, 3, v12\nv_lshlrev_b32 v12, 1, v12')
    a('v_lshl_add_u32 v12, v3, 8, v12\nv_lshl_add_u32 v12, v4, 9, v12\ns_lshl_b32 s5, s34, 10')
    for i in range(8):
        a(f'buffer_load_ushort v{40+i}, v12, s[36:39], s5 offen offset:{32*i}')
    for q in range(4):
        a(f'v_lshl_or_b32 v{24+q}, v{41+2*q}, 16, v{40+2*q}')
    a('v_cmp_ne_u32 vcc, 0, v4')
    for q in range(4):
        a(f'v_cndmask_b32 v{16+q}, v{24+q}, 0, vcc\nv_cndmask_b32 v{20+q}, 0, v{24+q}, vcc')
    a.drain(vm=True)
    a('s_branch L_prep_w1b')
    a('L_prep_v:')
    sel(5, 6, 4)
    a('s_waitcnt vmcnt(0)')
    a('L_prep_w1b:\ns_nop 1')
    mfmas(); center()
    a(f's_mul_i32 s40, s34, {96*1024}\ns_lshl_b32 s5, s35, 10\ns_add_u32 s40, s40, s5\ns_mul_i32 s5, s3, {8*3072}\ns_add_u32 s6, s40, s5')
    a(f's_add_u32 s6, s6, {W1}\ns_sub_u32 s6, s6, 3072')
    pack_store(9, lambda m, u: a('s_add_u32 s6, s6, 3072'))

    a('L_prep_gu:')
    srd(a, 12, 26, 512 * 1792 * 2); srd(a, 36, 28, 512 * 1792 * 2)
    rowmap('std', 3584)
    a(f's_sub_u32 s34, s2, 48\ns_lshl_b32 s4, s34, 5\ns_mul_i32 s5, s3, {128*3584}\ns_add_u32 s4, s4, s5')
    loads(12, 36, 0, 3584)
    sel(4, 6, 5)
    mfmas(); center()
    a(f's_lshl_b32 s6, s34, 15\ns_lshl_b32 s5, s3, 13\ns_add_u32 s6, s6, s5\ns_add_u32 s6, s6, {W3 - 1024}')
    pack_store(9, lambda m, u: a('s_add_u32 s6, s6, 1024'))

    a('L_prep_wd:')
    srd(a, 12, 30, 1792 * 512 * 2)
    rowmap('std', 1024)
    a('s_sub_u32 s34, s2, 160\ns_lshl_b32 s34, s34, 2\ns_add_u32 s34, s34, s3')
    a('s_mul_i32 s35, s34, 4682\ns_lshr_b32 s35, s35, 16\ns_mul_i32 s5, s35, 14\ns_sub_u32 s34, s34, s5')
    a('s_lshl_b32 s4, s34, 17\ns_lshl_b32 s5, s35, 6\ns_add_u32 s4, s4, s5')
    loads(12, 12, 32, 1024)
    sel(4, 6, 5)
    mfmas()
    def wd_off(m, u):
        a(f's_lshl_b32 s40, s34, 3\ns_add_u32 s40, s40, {2*m+u}\ns_mul_i32 s41, s40, 147\ns_lshr_b32 s41, s41, 10')
        a('s_mul_i32 s42, s41, 7\ns_sub_u32 s42, s40, s42\ns_lshr_b32 s43, s41, 2\ns_and_b32 s41, s41, 3')
        a('s_lshl_b32 s42, s42, 2\ns_add_u32 s42, s42, s41\ns_lshl_b32 s42, s42, 1\ns_xor_b32 s41, s35, s43\ns_and_b32 s41, s41, 1\ns_add_u32 s42, s42, s41')
        a('s_lshr_b32 s41, s35, 1\ns_lshl_b32 s41, s41, 2\ns_add_u32 s41, s41, s43\ns_mul_i32 s41, s41, 56\ns_add_u32 s41, s41, s42')
        a(f's_lshl_b32 s6, s41, 10\ns_add_u32 s6, s6, {W4}')
    pack_store(9, wd_off)

    a('L_prep_wo:')
    srd(a, 12, 22, 512 * 512 * 2)
    rowmap('o', 1024)
    a('s_sub_u32 s35, s2, 216\ns_lshl_b32 s4, s3, 17\ns_lshl_b32 s5, s35, 6\ns_add_u32 s4, s4, s5')
    loads(12, 12, 32, 1024)
    sel(4, 6, 5)
    mfmas()
    a('s_lshr_b32 s40, s35, 2\ns_lshl_b32 s40, s40, 2\ns_add_u32 s40, s40, s3\ns_lshl_b32 s40, s40, 15')
    a(f's_xor_b32 s41, s35, s3\ns_and_b32 s41, s41, 3\ns_lshl_b32 s41, s41, 10\ns_add_u32 s40, s40, s41\ns_add_u32 s40, s40, {W2}')
    pack_store(9, lambda m, u: a(f's_add_u32 s6, s40, {4096*(2*m+u)}'))

    a('L_prep_x:')
    srd(a, 12, 16, 2048 * 512 * 2)
    a('s_sub_u32 s35, s2, 232\nv_lshlrev_b32 v11, 10, v2\nv_lshl_add_u32 v11, v3, 4, v11')
    a('s_lshl_b32 s4, s35, 15\ns_lshl_b32 s5, s3, 8\ns_add_u32 s4, s4, s5')
    for s in range(8): a(f'buffer_load_dwordx4 v[{64+4*s}:{67+4*s}], v11, s[12:15], s4 offen offset:{32*s}')
    a(f's_lshl_b32 s6, s35, 15\ns_lshl_b32 s5, s3, 13\ns_add_u32 s6, s6, s5\ns_add_u32 s6, s6, {X}\ns_add_u32 s7, s6, 4096')
    a('v_mov_b32 v24, 0\nv_mov_b32 v25, 0')
    for s in range(8):
        a(f'buffer_store_dwordx4 v[{64+4*s}:{67+4*s}], v9, s[8:11], s{6 if s < 4 else 7} offen offset:{1024*(s%4)}')
        for q in range(4):
            r = 64 + 4 * s + q
            a(f'v_lshlrev_b32 v26, 16, v{r}\nv_and_b32 v27, 0xffff0000, v{r}')
            a('v_add_f32 v24, v24, v26\nv_fmac_f32 v25, v26, v26\nv_add_f32 v24, v24, v27\nv_fmac_f32 v25, v27, v27')
    a('v_permlane32_swap_b32 v24, v25\nv_add_f32 v24, v24, v25')
    a(f'v_lshl_add_u32 v26, v2, 1, v3\nv_lshlrev_b32 v26, 2, v26\ns_lshl_b32 s6, s35, 12\ns_lshl_b32 s5, s3, 10\ns_add_u32 s6, s6, s5\ns_add_u32 s6, s6, {ST}')
    a('v_mov_b32 v27, 0\nbuffer_store_dword v24, v26, s[8:11], s6 offen')
    for q in range(1, 4): a(f'buffer_store_dword v27, v26, s[8:11], s6 offen offset:{256*q}')
    a('L_prep_end:\ns_endpgm')
    return a.finish()
```

```python
from layout import *
from prep import srd, bit, onehot

SJOB, SJOB2, SNONCE = 38, 39, 19

def emit_prep(a, done, st='sc1', stamp=None):
    a('v_and_b32 v1, 63, v0\nv_and_b32 v2, 31, v0\nv_bfe_u32 v3, v0, 5, 1')
    bit(a, 4, 0, 2); bit(a, 5, 0, 3); bit(a, 6, 0, 4)
    a('v_and_b32 v7, 3, v0\nv_lshlrev_b32 v9, 4, v1')
    srd(a, 8, 32, WS_SIZE[0])
    a('s_and_b32 s44, s2, 7\ns_lshr_b32 s45, s2, 3')
    a('s_cmp_lt_u32 s45, 6\ns_cbranch_scc1 L_prep_w1\ns_cmp_lt_u32 s45, 11\ns_cbranch_scc1 L_prep_xw\ns_cmp_lt_u32 s45, 14\ns_cbranch_scc1 L_prep_x')
    a('s_cmp_lt_u32 s45, 28\ns_cbranch_scc1 L_prep_gu\ns_cmp_lt_u32 s45, 30\ns_cbranch_scc1 L_prep_wo\ns_branch L_prep_wd')

    def rowmap(kind, stride):
        if kind == 'std':
            a('v_lshlrev_b32 v11, 4, v6\nv_lshl_add_u32 v11, v4, 3, v11\nv_lshl_add_u32 v11, v5, 2, v11\nv_add_u32 v11, v11, v7')
        else:
            a('v_lshlrev_b32 v11, 4, v4\nv_lshl_add_u32 v11, v6, 3, v11\nv_lshl_add_u32 v11, v5, 2, v11\nv_add_u32 v11, v11, v7')
        a(f'v_mul_u32_u24 v11, {stride}, v11\nv_lshl_add_u32 v11, v3, 4, v11')
    def loads(srd1, srd2, off2, stride):
        for m in range(4):
            a(f'buffer_load_dwordx4 v[{64+8*m}:{67+8*m}], v11, s[{srd1}:{srd1+3}], s4 offen')
            a(f'buffer_load_dwordx4 v[{68+8*m}:{71+8*m}], v11, s[{srd2}:{srd2+3}], s4 offen offset:{off2}')
            if m < 3: a(f's_add_u32 s4, s4, {32*stride}')
    def sel(vcond_hi_eq, vhalf, vi4):
        a(f'v_lshl_add_u32 v12, v{vi4}, 2, v7')
        a(f'v_cmp_eq_u32 vcc, v3, v{vcond_hi_eq}\nv_cndmask_b32 v13, 0, 1, vcc')
        a(f'v_and_b32 v14, v13, v{vhalf}\nv_sub_u32 v13, v13, v14')
        onehot(a, 16, 12, 13, 24); onehot(a, 20, 12, 14, 24)
    def mfmas(second=False):
        if stamp and not second: a(stamp)
        for m in range(4):
            d = 96 + 16 * m
            a(f'v_mfma_f32_32x32x16_bf16 v[{d}:{d+15}], v[{64+8*m}:{67+8*m}], v[16:19], 0')
            a(f'v_mfma_f32_32x32x16_bf16 v[{d}:{d+15}], v[{68+8*m}:{71+8*m}], v[20:23], v[{d}:{d+15}]')
    def center():
        a('v_pk_add_f32 v[24:25], v[96:97], v[98:99]')
        for i in range(100, 160, 2): a(f'v_pk_add_f32 v[24:25], v[24:25], v[{i}:{i+1}]')
        a('v_add_f32 v24, v24, v25\nv_mov_b32 v25, v24\nv_permlane32_swap_b32 v24, v25\nv_add_f32 v24, v24, v25')
        a('s_lshl_b32 s5, s3, 8\nv_lshlrev_b32 v26, 2, v1\nv_add_u32 v27, s5, v26\nds_write_b32 v27, v24')
        a.drain(lgkm=True)
        a('s_barrier')
        a('ds_read2st64_b32 v[28:29], v26 offset0:0 offset1:1\nds_read2st64_b32 v[30:31], v26 offset0:2 offset1:3')
        a('v_pk_add_f32 v[28:29], v[28:29], v[30:31]\nv_add_f32 v28, v28, v29\nv_mul_f32 v28, 0xbb000000, v28')
        for i in range(96, 160, 2): a(f'v_pk_add_f32 v[{i}:{i+1}], v[{i}:{i+1}], v[28:29] op_sel_hi:[1,0]')
    def pack_store(soff_fn):
        for m in range(4):
            for u in range(2):
                s = 96 + 16 * m + 8 * u; d = 32 + 4 * (2 * m + u)
                for q in range(4): a(f'v_cvt_pk_bf16_f32 v{d+q}, v{s+2*q}, v{s+2*q+1}')
                soff_fn(m, u)
                a(f'buffer_store_dwordx4 v[{d}:{d+3}], v9, s[8:11], s6 offen {st}')
    def finish(job_sgpr, job2=None):
        a(f's_lshl_b32 s{SJOB}, s{job_sgpr}, 7\ns_add_u32 s{SJOB}, s{SJOB}, {FL}')
        a(f's_branch {done}')
    def zero(base_s, nl, offs):
        offs()
        a(f'v_mov_b32 v13, 0\ns_mov_b64 exec, {(1 << nl) - 1}\nbuffer_store_dword v13, v12, s[8:11], s{base_s} offen {st}\ns_mov_b64 exec, -1')

    a('L_prep_w1:')
    srd(a, 12, 18, 512 * 1536 * 2)
    rowmap('std', 3072)
    a('s_and_b32 s34, s45, 1\ns_lshl_b32 s35, s44, 1\ns_add_u32 s34, s34, s35\ns_lshr_b32 s35, s45, 1')
    a('s_add_u32 s5, s35, 1\ns_cmp_eq_u32 s35, 2\ns_cselect_b32 s5, 0, s5')
    a(f's_lshl_b32 s5, s5, 10\ns_lshl_b32 s4, s34, 6\ns_add_u32 s4, s4, s5\ns_mul_i32 s5, s3, {128*3072}\ns_add_u32 s4, s4, s5')
    loads(12, 12, 32, 3072)
    a('s_cmp_eq_u32 s35, 1\ns_cbranch_scc1 L_prep_v')
    srd(a, 40, 20, 32 * 16 * 16 * 2)
    a('v_lshl_add_u32 v12, v5, 2, v7\nv_lshl_add_u32 v12, v6, 3, v12\nv_lshlrev_b32 v12, 1, v12')
    a('v_lshl_add_u32 v12, v3, 8, v12\nv_lshl_add_u32 v12, v4, 9, v12\ns_lshl_b32 s5, s34, 10')
    for i in range(8): a(f'buffer_load_ushort v{40+i}, v12, s[40:43], s5 offen offset:{32*i}')
    a(f's_lshr_b32 s5, s35, 1\ns_lshl_b32 s5, s5, 13\ns_lshl_b32 s6, s34, 7\ns_add_u32 s5, s5, s6\ns_add_u32 s5, s5, {KVD}')
    zero(5, 4, lambda: a('v_lshlrev_b32 v12, 11, v1'))
    for q in range(4): a(f'v_lshl_or_b32 v{24+q}, v{41+2*q}, 16, v{40+2*q}')
    a('v_cmp_ne_u32 vcc, 0, v4')
    for q in range(4): a(f'v_cndmask_b32 v{16+q}, v{24+q}, 0, vcc\nv_cndmask_b32 v{20+q}, 0, v{24+q}, vcc')
    a('s_waitcnt vmcnt(1)\ns_branch L_prep_w1b')
    a('L_prep_v:')
    sel(5, 6, 4)
    a('s_waitcnt vmcnt(0)')
    a('L_prep_w1b:\ns_nop 1')
    a.forget()
    mfmas(); center()
    a(f's_mul_i32 s40, s34, {96*1024}\ns_lshl_b32 s5, s35, 10\ns_add_u32 s40, s40, s5\ns_mul_i32 s5, s3, {8*3072}\ns_add_u32 s6, s40, s5')
    a(f's_add_u32 s6, s6, {W1}\ns_sub_u32 s6, s6, 3072')
    pack_store(lambda m, u: a('s_add_u32 s6, s6, 3072'))
    a('s_lshl_b32 s35, s35, 4\ns_add_u32 s35, s35, s34'); finish(35)

    a('L_prep_gu:'); a.forget()
    srd(a, 12, 26, 512 * 1792 * 2); srd(a, 40, 28, 512 * 1792 * 2)
    rowmap('std', 3584)
    a(f's_mul_i32 s34, s44, 14\ns_add_u32 s34, s34, s45\ns_sub_u32 s34, s34, 14\ns_lshl_b32 s4, s34, 5\ns_mul_i32 s5, s3, {128*3584}\ns_add_u32 s4, s4, s5')
    loads(12, 40, 0, 3584)
    sel(4, 6, 5)
    mfmas(); center()
    a(f's_lshl_b32 s6, s34, 15\ns_lshl_b32 s5, s3, 13\ns_add_u32 s6, s6, s5\ns_add_u32 s6, s6, {W3 - 1024}')
    pack_store(lambda m, u: a('s_add_u32 s6, s6, 1024'))
    a('s_add_u32 s34, s34, 48'); finish(34)

    def wd_loads():
        srd(a, 40, 30, 1792 * 512 * 2)
        rowmap('std', 1024)
        a('s_lshl_b32 s34, s36, 2\ns_add_u32 s34, s34, s3')
        a('s_mul_i32 s37, s34, 4682\ns_lshr_b32 s37, s37, 16\ns_mul_i32 s5, s37, 14\ns_sub_u32 s34, s34, s5')
        a('s_lshl_b32 s4, s34, 17\ns_lshl_b32 s5, s37, 6\ns_add_u32 s4, s4, s5')
        loads(40, 40, 32, 1024)
    def wd_off(m, u):
        a(f's_lshl_b32 s40, s34, 3\ns_add_u32 s40, s40, {2*m+u}\ns_mul_i32 s41, s40, 147\ns_lshr_b32 s41, s41, 10')
        a('s_mul_i32 s42, s41, 7\ns_sub_u32 s42, s40, s42\ns_lshr_b32 s43, s41, 2\ns_and_b32 s41, s41, 3')
        a('s_lshl_b32 s42, s42, 2\ns_add_u32 s42, s42, s41\ns_lshl_b32 s42, s42, 1\ns_xor_b32 s41, s37, s43\ns_and_b32 s41, s41, 1\ns_add_u32 s42, s42, s41')
        a('s_lshr_b32 s41, s37, 1\ns_lshl_b32 s41, s41, 2\ns_add_u32 s41, s41, s43\ns_mul_i32 s41, s41, 56\ns_add_u32 s41, s41, s42')
        a(f's_lshl_b32 s6, s41, 10\ns_add_u32 s6, s6, {W4}')
    def wd_rest(second=False):
        sel(4, 6, 5); mfmas(second); pack_store(wd_off)
        a('s_add_u32 s36, s36, 160'); finish(36)
    a('L_prep_wd:'); a.forget()
    a('s_mul_i32 s36, s44, 7\ns_add_u32 s36, s36, s45\ns_sub_u32 s36, s36, 30')
    wd_loads(); wd_rest()

    a('L_prep_wo:'); a.forget()
    srd(a, 12, 22, 512 * 512 * 2)
    rowmap('o', 1024)
    a('s_lshl_b32 s35, s44, 1\ns_add_u32 s35, s35, s45\ns_sub_u32 s35, s35, 28\ns_lshl_b32 s4, s3, 17\ns_lshl_b32 s5, s35, 6\ns_add_u32 s4, s4, s5')
    loads(12, 12, 32, 1024)
    sel(4, 6, 5)
    mfmas()
    a('s_lshr_b32 s40, s35, 2\ns_lshl_b32 s40, s40, 2\ns_add_u32 s40, s40, s3\ns_lshl_b32 s40, s40, 15')
    a(f's_xor_b32 s41, s35, s3\ns_and_b32 s41, s41, 3\ns_lshl_b32 s41, s41, 10\ns_add_u32 s40, s40, s41\ns_add_u32 s40, s40, {W2}')
    pack_store(lambda m, u: a(f's_add_u32 s6, s40, {4096*(2*m+u)}'))
    a('s_add_u32 s35, s35, 216'); finish(35)

    def x_loads():
        srd(a, 12, 16, 2048 * 512 * 2)
        a('s_lshl_b32 s35, s44, 3\ns_add_u32 s35, s35, s45\ns_sub_u32 s35, s35, 6\nv_lshlrev_b32 v10, 10, v2\nv_lshl_add_u32 v10, v3, 4, v10')
        a('s_lshl_b32 s4, s35, 15\ns_lshl_b32 s5, s3, 8\ns_add_u32 s4, s4, s5')
        for s in range(8): a(f'buffer_load_dwordx4 v[{160+4*s}:{163+4*s}], v10, s[12:15], s4 offen offset:{32*s}')
    def x_rest():
        if stamp: a(stamp)
        a(f's_lshl_b32 s5, s35, 9\ns_add_u32 s5, s5, {HC}')
        zero(5, 16, lambda: a(f'v_and_b32 v12, 3, v1\nv_lshlrev_b32 v12, 7, v12\nv_lshrrev_b32 v13, 2, v1\nv_lshl_add_u32 v12, v13, 15, v12'))
        a(f's_lshl_b32 s5, s35, 7\ns_add_u32 s5, s5, {X1C}')
        zero(5, 3, lambda: a('v_lshlrev_b32 v12, 13, v1'))
        a(f's_lshl_b32 s6, s35, 15\ns_lshl_b32 s5, s3, 13\ns_add_u32 s6, s6, s5\ns_add_u32 s6, s6, {X}\ns_add_u32 s7, s6, 4096')
        a('v_mov_b32 v24, 0\nv_mov_b32 v25, 0\nv_mov_b32 v26, 0\nv_mov_b32 v27, 0')
        for s in range(8):
            a(f'buffer_store_dwordx4 v[{160+4*s}:{163+4*s}], v9, s[8:11], s{6 if s < 4 else 7} offen offset:{1024*(s%4)} {st}')
            for q in range(4):
                r = 160 + 4 * s + q
                a(f'v_lshlrev_b32 v28, 16, v{r}\nv_and_b32 v29, 0xffff0000, v{r}')
                a('v_pk_add_f32 v[24:25], v[24:25], v[28:29]\nv_pk_fma_f32 v[26:27], v[28:29], v[28:29], v[26:27]')
        a('v_add_f32 v24, v24, v25\nv_add_f32 v25, v26, v27\nv_permlane32_swap_b32 v24, v25\nv_add_f32 v24, v24, v25')
        a(f'v_lshl_add_u32 v26, v2, 1, v3\nv_lshlrev_b32 v26, 2, v26\ns_lshl_b32 s6, s35, 12\ns_lshl_b32 s5, s3, 10\ns_add_u32 s6, s6, s5\ns_add_u32 s6, s6, {ST}')
        a(f'v_mov_b32 v27, 0\nbuffer_store_dword v24, v26, s[8:11], s6 offen {st}')
        for q in range(1, 4): a(f'buffer_store_dword v27, v26, s[8:11], s6 offen offset:{256*q} {st}')
        a('s_add_u32 s35, s35, 232')
    a('L_prep_x:'); a.forget()
    x_loads(); x_rest(); finish(35)
    a('L_prep_xw:'); a.forget()
    x_loads()
    a('s_mul_i32 s36, s44, 7\ns_add_u32 s36, s36, s45\ns_sub_u32 s36, s36, 4')
    wd_loads()
    x_rest()
    a(f's_lshl_b32 s5, s35, 7\ns_add_u32 s5, s5, {FL}\nv_mov_b32 v12, 0\ns_waitcnt lgkmcnt(0)\ns_add_u32 s7, s{SNONCE0}, 1\nv_mov_b32 v13, s7')
    a('s_waitcnt vmcnt(0)\ns_barrier\ns_mov_b64 exec, 1')
    a(f'buffer_store_dword v13, v12, s[8:11], s5 offen sc1\ns_mov_b64 exec, -1')
    wd_rest(True)

SNONCE0 = 60
WS_SIZE = [WS_END]
```

```python
import sys
sys.path.insert(0, 'gen')
import prep, mainq
HEAD = open('interleave_layers__linear_kernel_hedgehog__glu_gated_bilinear__prompt.s.ref').read().split('; Override launch')[0]
def kd(name, vg, acc, sg=102):
    return (f'.p2align 6\n.amdhsa_kernel {name}\n  .amdhsa_next_free_vgpr {vg}\n  .amdhsa_next_free_sgpr {sg}\n  .amdhsa_accum_offset {acc}\n'
            '  .amdhsa_group_segment_fixed_size 0\n  .amdhsa_kernarg_size 88\n  .amdhsa_user_sgpr_count 2\n  .amdhsa_user_sgpr_kernarg_segment_ptr 1\n'
            '  .amdhsa_system_sgpr_workgroup_id_x 1\n  .amdhsa_float_denorm_mode_32 3\n.end_amdhsa_kernel\n')
KNAME = 'interleave_layers__linear_kernel_hedgehog__glu_gated_bilinear__prompt_kernel'
def build(cfg):
    m, g = mainq.gen_main(KNAME, cfg)
    s = HEAD + '; @launch grid=(256,1,1) block=(256,1,1) lds=163840\n'
    s += '.amdgcn_target "amdgcn-amd-amdhsa--gfx950"\n.text\n' + m
    s += '.section .rodata,"a"\n' + kd(KNAME, 512, 256)
    return s, g
if __name__ == '__main__':
    cfg = {}
    out = sys.argv[1]
    for kv in sys.argv[2:]:
        k, val = kv.split('='); cfg[k] = int(val) if val.lstrip('-').isdigit() else val
    s, g = build(cfg)
    open(out, 'w').write(s)
    if cfg.get('diag'): open(out[:-2] + '.names', 'w').write(' '.join(g.names))
    print('lines', len(s.splitlines()), 'stats', g.a.stats, 'stamps', g.nstamp)
```

```python
import re
from asmlib import Asm, weave
from layout import *
from prep import srd, onehot
import prep2

LB = 0x18000
TIMEOUT = 1 << 16
M32 = 'v_mfma_f32_32x32x16_bf16'
M16 = 'v_mfma_f32_16x16x32_bf16'
vL16, vLA, vLC, vL4 = 1, 2, 3, 4
XR = 128
SEL0, SEL1 = 248, 252
aKVW, aZW, aRSW, aRSV, aBP, aST4, aOUT, aOWN, aC4, aTW, aKVA, aZA, aZB = range(232, 245)
TOT = LB + 0x3000
ZERO = LB + 0x7000
ZPRIV = 0x3C00
sW, sR, sJ, sTB = 3, 16, 17, 18
sXB, sSTB, sW1, sW3, sW2, sW4, sL4K, sL16K = 20, 21, 22, 23, 24, 25, 26, 27
sTB2, sBLK2, sTB4, sBLK4, sTBA, sTBB = 28, 29, 30, 31, 32, 33
sD, sTO, sT0, sT1, sT2, sT3 = 40, 41, 42, 43, 46, 47
sHC, sHA, sHL0, sHL1, sD2, sD3 = 48, 49, 50, 51, 52, 53
RA = 120
sNO, sFL = 60, 61
sCB, sAV, sHC2, sP0 = 4, 19, 37, 54

def v(a, n=4): return f'v[{a}:{a+n-1}]'
def ag(a, n=4): return f'a[{a}:{a+n-1}]'

class Gen:
    def __init__(self, name, cfg):
        self.a = Asm(); self.name = name; self.cfg = cfg; self.nl = 0; self.nstamp = 0; self.names = []; self.pf = cfg.get('pollfl', 'sc1').replace('+', ' '); self.af = cfg.get('atomfl', 'sc1').replace('+', ' ').replace('none', '')
    def label(self, s):
        self.nl += 1; return f'L_{s}_{self.nl}'
    def stamp(self, name='x'):
        if not self.cfg.get('diag'): return
        if name.startswith('_') and not re.search(self.cfg.get('fine', '^$'), name): return
        if self.cfg.get('only') is not None and not name.endswith(str(self.cfg['only'])): return
        self.names.append(name)
        a = self.a; k = self.nstamp; self.nstamp += 1
        if k >= 38: self.names.pop(); self.nstamp -= 1; return
        a(f"{'s_memtime' if self.cfg.get('clk') else 's_memrealtime'} s[44:45]\ns_waitcnt lgkmcnt(0)\ns_mov_b32 s{62+k}, s44")
    def lds(self, off):
        base = (vL16, vLA, vLC)[off >> 16]
        return f'v{base} offset:{off & 0xffff}'
    def dma4(self, sl, lds_off, sg, g_off, tag):
        first = [f's_add_u32 m0, s{sl}, {lds_off}', f's_add_u32 s{sD}, s{sg}, {g_off}']
        g = []
        for k in range(4):
            ld = (f'buffer_load_dwordx4 v{vL16}, s[8:11], s{sD} offen offset:{1024*k} sc1 lds', tag)
            g.append((first if k == 0 else []) + [ld])
        return g
    def ld(self, dst, sbase, off, st, tag=None, va=vL16, sc=True):
        hi, lo = off & ~0xfff, off & 0xfff
        out = []
        if hi: out.append(f's_add_u32 s{st}, s{sbase}, {hi}'); s = st
        else: s = sbase
        out.append((f'buffer_load_dwordx4 {dst}, v{va}, s[8:11], s{s} offen offset:{lo}' + (' sc1' if sc else ''), tag))
        return out
    def peek(self, offs):
        o = []
        for k, so in enumerate(offs): o += [f's_mov_b32 s{sP0+k}, 0', f's_atomic_add s{sP0+k}, s[{sCB}:{sCB+1}], s{so} glc']
        return o
    def test(self, n, target, field=None):
        o = []
        for k in range(n):
            if field is not None: o.append(f's_bfe_u32 s{sP0+k}, s{sP0+k}, {(8 << 16) | (8 * field)}')
            o.append(f's_xor_b32 s{sP0+k}, s{sP0+k}, {target}')
            if k: o.append(f's_or_b32 s{sP0}, s{sP0}, s{sP0+k}')
        return o + [f's_cmp_eq_u32 s{sP0}, 0']
    def settle(self, offs, target, field=None):
        L = self.label('spin'); D = self.label('ok'); t = self.test(len(offs), target, field)
        return t + [f's_cbranch_scc1 {D}', f's_mov_b32 s{sTO}, {TIMEOUT}', f'{L}:'] + self.peek(offs) + ['s_waitcnt lgkmcnt(0) ; slow path'] + t + \
               [f's_cbranch_scc1 {D}', f's_sub_u32 s{sTO}, s{sTO}, 1', f's_cbranch_scc0 {L}', f'{D}:']
    def poll(self, offs, target):
        self.a.extend(self.peek(offs) + self.settle(offs, target))
    def arrive_l(self, so, val=1):
        return [f's_mov_b32 s{sAV}, {val}', f's_atomic_add s{sAV}, s[{sCB}:{sCB+1}], s{so}']
    def arrive(self, so, val=1):
        self.a.extend(self.arrive_l(so, val))
    def vpeek(self, mask):
        return ['v_mov_b32 v124, 0', f's_mov_b64 exec, {mask}', f'buffer_atomic_add v124, v125, s[8:11], s{sFL} offen sc0 sc1', 's_mov_b64 exec, -1']
    def vsettle(self, mask):
        L = self.label('spin'); D = self.label('ok'); t = [f'v_cmp_ne_u32 vcc, s{sNO}, v124']
        return [f's_mov_b64 exec, {mask}'] + t + [f's_cbranch_vccz {D}', f's_mov_b32 s{sTO}, {TIMEOUT}', f'{L}:', 'v_mov_b32 v124, 0', f'buffer_atomic_add v124, v125, s[8:11], s{sFL} offen sc0 sc1',
                    's_waitcnt vmcnt(0) ; vslow path', 's_nop 0'] + t + [f's_cbranch_vccz {D}', f's_sub_u32 s{sTO}, s{sTO}, 1', f's_cbranch_scc0 {L}', f'{D}:', 's_mov_b64 exec, -1']

    def init(self):
        a = self.a; n = self.name
        prep2.WS_SIZE[0] = WS_END if not self.cfg.get('diag') else DBG + 0x40000
        a(f'.globl {n}\n.p2align 8\n.type {n},@function\n{n}:')
        a('s_cmp_lt_u32 s2, 256\ns_cbranch_scc1 L_main_go\ns_endpgm\nL_main_go:')
        a('s_load_dwordx2 s[32:33], s[0:1], 80\ns_load_dwordx16 s[16:31], s[0:1], 0')
        if self.cfg.get('diag'): a('s_memrealtime s[56:57]')
        a(f'v_lshrrev_b32 v5, 6, v0\nv_readfirstlane_b32 s{sW}, v5')
        if self.cfg.get('codepf', 1):
            a(f's_getpc_b64 s[44:45]\nL_pc:\ns_lshr_b32 s4, s2, 3\ns_lshl_b32 s4, s4, 2\ns_add_u32 s4, s4, s{sW}\ns_min_u32 s4, s4, (L_code_end-L_pc)/1024-1\ns_lshl_b32 s4, s4, 10')
            a('s_add_u32 s44, s44, s4\ns_addc_u32 s45, s45, 0\ns_and_b32 s44, s44, -16\nv_and_b32 v12, 63, v0\nv_lshlrev_b32 v12, 4, v12\nv_mov_b32 v13, s45\nv_add_co_u32 v12, vcc, s44, v12\nv_addc_co_u32 v13, vcc, 0, v13, vcc')
            a('global_load_dwordx4 v[252:255], v[12:13], off')
        a(f's_waitcnt lgkmcnt(0)\ns_add_u32 s46, s32, {NW}\ns_addc_u32 s47, s33, 0\ns_load_dword s{sNO}, s[46:47], 0')
        tg = self.cfg.get('touch', 0)
        if tg:
            a(f's_load_dwordx2 s[6:7], s[0:1], 64\ns_mov_b32 s48, s32\ns_and_b32 s49, s33, 0xffff\ns_mov_b32 s50, {WS_END}\ns_mov_b32 s51, 0x20000')
            a(f'v_lshlrev_b32 v12, {tg}, v0\nv_add_u32 v12, 0x1f80, v12\nv_mov_b32 v251, 0\nbuffer_load_dword v251, v12, s[48:51], 0 offen sc1')
            a(f's_waitcnt lgkmcnt(0)\ns_mov_b32 s48, s6\ns_and_b32 s49, s7, 0xffff\ns_mov_b32 s50, {2048*512*2}\nbuffer_load_dword v250, v12, s[48:51], 0 offen sc1')
        a.forget()
        st = None
        if self.cfg.get('diag') and 'prep' in self.cfg.get('fine', ''):
            self.names.append('_prep.loaded0'); self.nstamp += 1
            st = 's_waitcnt vmcnt(0)\ns_memrealtime s[46:47]\ns_waitcnt lgkmcnt(0)\ns_mov_b32 s62, s46'
        prep2.emit_prep(a, 'L_prep_done', stamp=st)
        a('L_prep_done:'); a.forget()
        self.stamp('_prep.st0')
        a(f's_load_dwordx2 s[6:7], s[0:1], 64\ns_mov_b64 s[{sCB}:{sCB+1}], s[32:33]')
        a('v_and_b32 v6, 63, v0\nv_lshlrev_b32 v1, 4, v6')
        if self.cfg.get('map', 'B') == 'A':
            a(f's_and_b32 s{sT0}, s2, 7\ns_lshr_b32 s{sT1}, s2, 3\ns_lshr_b32 s{sR}, s{sT1}, 4\ns_lshl_b32 s{sT0}, s{sT0}, 1\ns_add_u32 s{sR}, s{sR}, s{sT0}\ns_and_b32 s{sJ}, s{sT1}, 15')
        else:
            a(f's_and_b32 s{sT0}, s2, 7\ns_lshr_b32 s{sT1}, s2, 3\ns_lshr_b32 s{sR}, s{sT1}, 3\ns_lshr_b32 s{sT2}, s{sT0}, 1\ns_lshl_b32 s{sT2}, s{sT2}, 2\ns_add_u32 s{sR}, s{sR}, s{sT2}')
            a(f's_and_b32 s{sJ}, s{sT1}, 7\ns_and_b32 s{sT0}, s{sT0}, 1\ns_lshl_b32 s{sT0}, s{sT0}, 3\ns_add_u32 s{sJ}, s{sJ}, s{sT0}')
        a(f's_lshl_b32 s{sL4K}, s{sW}, 12\ns_lshl_b32 s{sL16K}, s{sW}, 14')
        a(f's_mul_i32 s{sW1}, s{sJ}, {96*1024}\ns_add_u32 s{sW1}, s{sW1}, s{sL4K}')
        a(f's_lshl_b32 s{sTB}, s{sR}, 2\ns_add_u32 s{sTB}, s{sTB}, s{sW}\ns_lshl_b32 s{sXB}, s{sTB}, 15\ns_lshl_b32 s{sSTB}, s{sTB}, 12')
        a(f's_waitcnt lgkmcnt(0)\ns_add_u32 s{sNO}, s{sNO}, 1\ns_mov_b32 s{sFL}, {FL}')
        self.init2()
        a(f'v_and_b32 v6, 63, v0\nv_lshlrev_b32 v7, 4, v6\nv_add_u32 v7, s{sJ}, v7\ns_add_u32 s{sT0}, s{sTB}, 232\nv_mov_b32 v8, s{sT0}\nv_cmp_eq_u32 vcc, 3, v6\nv_cndmask_b32 v7, v7, v8, vcc\nv_lshlrev_b32 v7, 7, v7')
        a(f's_and_b32 s{sT0}, s{sBLK2}, 12\ns_add_u32 s{sT0}, s{sT0}, 216\ns_mul_i32 s{sT1}, s{sJ}, 7\ns_add_u32 s{sT1}, s{sT1}, 44\ns_lshr_b32 s{sT2}, s{sBLK4}, 1\ns_mul_i32 s{sT2}, s{sT2}, 7\ns_add_u32 s{sT2}, s{sT2}, 149')
        a(f'v_mov_b32 v8, s{sT0}\nv_mov_b32 v9, s{sT1}\nv_mov_b32 v10, s{sT2}\nv_cmp_lt_u32 vcc, 3, v6\nv_cndmask_b32 v8, v8, v9, vcc\nv_cmp_lt_u32 vcc, 10, v6\nv_cndmask_b32 v8, v8, v10, vcc')
        a(f'v_add_u32 v8, v8, v6\nv_lshlrev_b32 v125, 7, v8\nv_mov_b32 v8, 0\nv_mov_b32 v9, s{sNO}')
        a('s_waitcnt vmcnt(0)\ns_barrier')
        a(f's_cmp_lg_u32 s{sW}, 0\ns_cbranch_scc1 L_noflag\ns_mov_b64 exec, 1\nbuffer_store_dword v9, v8, s[8:11], s{prep2.SJOB} offen sc1\ns_mov_b64 exec, -1\nL_noflag:')
        a.forget()
        self.stamp('_prep.pub0')
        a(f'v_mov_b32 v8, v125\nv_mov_b32 v125, v7')
        a.extend(self.vpeek(15) + self.vsettle(15))
        a('v_mov_b32 v125, v8')
    def init2(self):
        a = self.a
        srd(a, 12, 6, 2048 * 512 * 2)
        a(f's_mul_i32 s{sW3}, s{sJ}, {224*1024}\ns_add_u32 s{sW3}, s{sW3}, {W3}')
        a(f's_and_b32 s{sT0}, s{sJ}, 3\ns_lshl_b32 s{sT0}, s{sT0}, 2\ns_add_u32 s{sBLK2}, s{sT0}, s{sW}\ns_lshl_b32 s{sW2}, s{sBLK2}, 15\ns_add_u32 s{sW2}, s{sW2}, {W2}')
        a(f's_lshr_b32 s{sT0}, s{sJ}, 2\ns_lshl_b32 s{sTB2}, s{sR}, 2\ns_add_u32 s{sTB2}, s{sTB2}, s{sT0}')
        a(f's_and_b32 s{sT0}, s{sJ}, 7\ns_lshl_b32 s{sT1}, s{sT0}, 2\ns_add_u32 s{sT1}, s{sT1}, s{sW}\ns_mul_i32 s{sW4}, s{sT1}, {56*1024}\ns_add_u32 s{sW4}, s{sW4}, {W4}')
        a(f's_lshl_b32 s{sT0}, s{sT0}, 1\ns_and_b32 s{sT1}, s{sW}, 1\ns_add_u32 s{sBLK4}, s{sT0}, s{sT1}')
        a(f's_lshr_b32 s{sT0}, s{sJ}, 3\ns_lshl_b32 s{sT0}, s{sT0}, 1\ns_lshl_b32 s{sT1}, s{sR}, 2\ns_add_u32 s{sT0}, s{sT0}, s{sT1}')
        a(f's_lshr_b32 s{sT1}, s{sW}, 1\ns_add_u32 s{sTB4}, s{sT0}, s{sT1}\ns_xor_b32 s{sT1}, s{sT1}, 1\ns_add_u32 s{sTBB}, s{sT0}, s{sT1}\ns_mov_b32 s{sTBA}, s{sTB4}')
        a(f'v_add_u32 v{vLA}, 0x10000, v1\nv_add_u32 v{vLC}, 0x20000, v1\nv_lshlrev_b32 v{vL4}, 2, v6')
        a('v_and_b32 v7, 31, v6\nv_lshrrev_b32 v8, 5, v6\nv_bfe_u32 v9, v6, 2, 1\nv_bfe_u32 v10, v6, 3, 1\nv_bfe_u32 v11, v6, 4, 1\nv_and_b32 v12, 3, v6')
        a('v_and_b32 v13, 15, v6\nv_lshrrev_b32 v14, 4, v6')
        a(f's_add_u32 s{sT0}, s{sL16K}, {LB}')
        def park(dst): a(f'v_accvgpr_write_b32 a{dst}, v15')
        a(f'v_lshlrev_b32 v15, 4, v7\nv_lshl_add_u32 v15, v8, 10, v15\nv_add_u32 v15, s{sT0}, v15'); park(aKVW)
        a(f'v_lshl_add_u32 v15, v10, 2, v12\nv_lshl_add_u32 v15, v9, 3, v15\nv_lshl_add_u32 v15, v8, 4, v15\nv_lshl_add_u32 v15, v11, 5, v15\nv_lshlrev_b32 v15, 2, v15\nv_add_u32 v15, s{sT0}, v15'); park(aZW)
        a(f'v_lshl_add_u32 v15, v13, 1, v8\nv_lshlrev_b32 v15, 2, v15\nv_add_u32 v15, s{sT0}, v15'); park(aRSW)
        a(f'v_lshlrev_b32 v15, 4, v8\nv_add_u32 v15, s{sT0}, v15'); park(aRSV)
        a('v_and_b32 v15, 1, v6\nv_lshlrev_b32 v15, 5, v15\nv_lshrrev_b32 v16, 1, v7\nv_add_u32 v15, v15, v16\nv_lshlrev_b32 v15, 2, v15'); park(aBP)
        a('v_lshl_add_u32 v15, v7, 1, v8\nv_lshlrev_b32 v15, 2, v15'); park(aST4)
        a('v_lshlrev_b32 v15, 10, v7\nv_lshl_add_u32 v15, v8, 4, v15'); park(aOUT)
        a(f'v_add_u32 v15, s{sT0}, v1'); park(aOWN)
        a('v_mov_b32 v15, v11'); park(aC4)
        a(f's_lshl_b32 s{sT1}, s{sW}, 9\ns_add_u32 s{sT1}, s{sT1}, {TOT}\nv_lshlrev_b32 v15, 4, v7\nv_lshl_add_u32 v15, v8, 3, v15\nv_add_u32 v15, s{sT1}, v15'); park(aTW)
        a(f'v_cmp_eq_u32 vcc, v9, v8\nv_lshrrev_b32 v16, 3, v7\nv_lshl_add_u32 v16, v16, 2, v12\nv_lshl_add_u32 v16, v8, 4, v16\nv_lshlrev_b32 v16, 4, v16\nv_add_u32 v16, {TOT}, v16')
        a(f'v_mov_b32 v17, {ZERO}\nv_cndmask_b32 v15, v17, v16, vcc'); park(aKVA)
        a(f'v_lshlrev_b32 v16, 6, v8\nv_add_u32 v16, s{sT0}, v16\nv_add_u32 v16, {ZPRIV}, v16\nv_cndmask_b32 v15, v17, v16, vcc'); park(aZA)
        a(f'v_lshl_add_u32 v15, v13, 2, v14\nv_lshlrev_b32 v15, 1, v15\nv_add_u32 v15, s{sT0}, v15\nv_add_u32 v15, {ZPRIV}, v15'); park(aZB)
        a('v_lshl_add_u32 v16, v10, 2, v12\nv_cmp_eq_u32 vcc, v11, v8\nv_cndmask_b32 v17, 0, 1, vcc\nv_and_b32 v18, v17, v9\nv_sub_u32 v17, v17, v18')
        onehot(a, 20, 16, 17, 28); onehot(a, 24, 16, 18, 28)
        for q in range(8): a(f'v_accvgpr_write_b32 a{SEL0+q}, v{20+q}')

    def stat_loads(self, xi):
        out = [f's_add_u32 s{sT0}, s{sSTB}, {ST + xi*0x40000}']
        for i in range(4): out.append(f'buffer_load_dwordx4 {v(96+4*i)}, v{vL16}, s[8:11], s{sT0} offen offset:{1024*i} sc1')
        return out
    def rstd(self):
        o = []
        for k in range(4): o += [f'v_add_f32 v{96+k}, v{96+k}, v{100+k}', f'v_add_f32 v{104+k}, v{104+k}, v{108+k}']
        for k in range(4): o += [f'v_add_f32 v{96+k}, v{96+k}, v{104+k}']
        o += ['v_permlane32_swap_b32 v96, v98', 'v_permlane32_swap_b32 v97, v99', 'v_add_f32 v96, v96, v98', 'v_add_f32 v97, v97, v99',
              'v_permlane16_swap_b32 v96, v97', 'v_add_f32 v96, v96, v97', 'v_mov_b32 v97, v96', 'v_permlane16_swap_b32 v96, v97',
              'v_mul_f32 v96, 0x3b000000, v96', 'v_mul_f32 v97, 0x3b000000, v97', 'v_fma_f32 v97, -v96, v96, v97',
              'v_max_f32 v97, 0, v97', 'v_add_f32 v97, 0x3727c5ac, v97', 'v_rsq_f32 v96, v97']
        return o
    def xload(self, xi, s):
        return self.ld(v(XR + 4 * s), sT3, 1024 * s, sT1)
    def features(self, p, en, dst, t):
        mx, mn = t, t + 1; sp, sn = t + 2, t + 4
        pr = lambda r: f'v[{r}:{r+1}]'
        o = [f'v_max3_f32 v{mx}, v{p}, v{p+1}, v{p+2}', f'v_min3_f32 v{mn}, v{p}, v{p+1}, v{p+2}']
        for k in range(3, 15, 2):
            o += [f'v_max3_f32 v{mx}, v{mx}, v{p+k}, v{p+k+1}', f'v_min3_f32 v{mn}, v{mn}, v{p+k}, v{p+k+1}']
        o += [f'v_max_f32 v{mx}, v{mx}, v{p+15}', f'v_min_f32 v{mn}, v{mn}, v{p+15}']
        o += [f'v_mul_f32 v{mx}, -v5, v{mx}', f'v_mul_f32 v{mn}, v5, v{mn}']
        for k in range(0, 16, 2):
            o += [f'v_pk_fma_f32 {pr(en+k)}, {pr(p+k)}, v[4:5], {pr(t)} op_sel:[0,1,1] op_sel_hi:[1,1,1] neg_lo:[0,1,0] neg_hi:[0,1,0]',
                  f'v_pk_fma_f32 {pr(p+k)}, {pr(p+k)}, v[4:5], {pr(t)} op_sel:[0,1,0] op_sel_hi:[1,1,0]']
            if k: o += [f'v_exp_f32 v{x}, v{x}' for x in (p + k - 2, p + k - 1, en + k - 2, en + k - 1)]
        o += [f'v_exp_f32 v{x}, v{x}' for x in (p + 14, p + 15, en + 14, en + 15)]
        o += [f'v_pk_add_f32 {pr(sp)}, {pr(p)}, {pr(p+2)}', f'v_pk_add_f32 {pr(sn)}, {pr(en)}, {pr(en+2)}']
        for k in range(4, 16, 2):
            o += [f'v_pk_add_f32 {pr(sp)}, {pr(sp)}, {pr(p+k)}', f'v_pk_add_f32 {pr(sn)}, {pr(sn)}, {pr(en+k)}']
        o += [f'v_add_f32 v{sp}, v{sp}, v{sp+1}', f'v_add_f32 v{sn}, v{sn}, v{sn+1}', f'v_rcp_f32 v{sp}, v{sp}', f'v_rcp_f32 v{sn}, v{sn}']
        groups = []
        for (src, sc, d) in ((p, sp, dst), (en, sn, dst + 8)):
            for g in range(2):
                q4 = range(4 * g, 4 * g + 4)
                groups.append([f'v_pk_mul_f32 {pr(src+2*q)}, {pr(src+2*q)}, {pr(sc)} op_sel_hi:[1,0]' for q in q4] +
                              [f'v_cvt_pk_bf16_f32 v{d+q}, v{src+2*q}, v{src+2*q+1}' for q in q4])
        return o, groups
    def unpack(self, src, dst, wr=None):
        o = []
        for q in range(8):
            o += [f'v_lshlrev_b32 v{dst(2*q)}, 16, v{src+q}', f'v_and_b32 v{dst(2*q+1)}, 0xffff0000, v{src+q}']
        return o

    def p1(self, l):
        a = self.a; xi = 2 * l; NX0 = 14; PD = 7
        aK, aV, aQ, WB = 16, 32, 48, 64
        def w1dma(q):
            g = self.dma4(sT2, 24576 * q, sD2, W1 + 24576 * q, f'w1_{q}')
            g2 = self.dma4(sT2, 24576 * q + 4096, sD2, W1 + 24576 * q + 4096, f'w1_{q}')[:2]
            return g + g2
        ins = {}
        def put(n, x): ins.setdefault(n, []).extend(x if isinstance(x, list) else [x])
        a(f's_add_u32 s{sT3}, s{sXB}, {X + xi*0x200000}')
        if l == 0:
            a(f's_mul_i32 s{sT2}, s{sW}, 6144\ns_mul_i32 s{sD2}, s{sJ}, {96*1024}\ns_add_u32 s{sD2}, s{sD2}, s{sT2}')
            self.stamp(f'p1.start{l}')
            a.extend(sum(w1dma(0), []))
            for s in range(8): a.extend(self.xload(xi, s))
            a.extend(sum(w1dma(1), []))
            seq = [self.xload(xi, s) for s in range(8, 16)] + [self.stat_loads(xi)]
            for q in (2, 3): seq += w1dma(q) + [self.xload(xi, s) for s in range(8 * q, 8 * q + 8)]
            for k, g in enumerate(seq): put(k + (k >> 1), g)
            for q in (1, 2, 3): put(24 * q - PD - 1, [('wait_tag', f'w1_{q}'), 's_barrier'])
            a.wait_tag('w1_0')
            n_rstd, n_w2 = 46, 62
            put(40, self.vpeek(0x3ffff)); put(60, self.vsettle(0x3ffff))
        else:
            a(f's_lshl_b32 s{sT0}, s{sTB}, 7\ns_add_u32 s{sT0}, s{sT0}, {X2C}')
            self.poll([sT0], 16)
            a.wait_tag('w1')
            self.stamp(f'p1.start{l}')
            for s in range(NX0): a.extend(self.xload(xi, s))
            for s in range(NX0, 32): put(3 * (s - NX0), self.xload(xi, s))
            put(4, self.stat_loads(xi))
            n_rstd, n_w2 = 36, 54
        a('s_barrier')
        rs = [f'v_accvgpr_read_b32 v7, a{aRSW}', f'v_accvgpr_read_b32 v9, a{aBP}'] + self.rstd() + [f'ds_write_b32 v7, v96 offset:{0x3000}', 'ds_bpermute_b32 v5, v9, v96',
              f'v_accvgpr_read_b32 v8, a{aRSV}']
        for k, x in enumerate(rs): put(n_rstd + k, x)
        put(n_rstd + len(rs) + 8, 'v_mul_f32 v5, 0x3fb8aa3b, v5')
        w2l = [self.ld(v(XR + 4 * s), sW2, 1024 * s, sT1) for s in range(32)]
        nw2 = 0
        for n in range(n_w2, 96, 3):
            assert 3 * nw2 + 2 <= n
            put(n, w2l[nw2]); nw2 += 1
        rd = lambda n: f'ds_read_b128 {v(WB + 4*(n%8))}, {self.lds(1024*n)}'
        for n in range(PD): a(rd(n))
        for n in range(96):
            s, T = divmod(n, 3); acc = (aK, aV, aQ)[T]; w = v(WB + 4 * (n % 8)); x = v(XR + 4 * s)
            c = v(acc, 16) if s else '0'
            a(f'{M32} {v(acc,16)}, {x}, {w}, {c}' if T == 1 else f'{M32} {v(acc,16)}, {w}, {x}, {c}')
            if n + PD < 96: a(rd(n + PD))
            a.extend(ins.get(n, []))
        self.stamp(f'p1.gemm{l}')
        a('s_barrier')
        a(f's_add_u32 s{sT2}, s{sW3}, s{sL4K}')
        pre = w2l[nw2:] + sum([self.dma4(sL4K, 16384 * b, sT2, 16384 * b, 'w3a') for b in range(6)], [])
        ev = self.cfg.get('pace1', 10)
        def paced(body, start=4, extra=()):
            ex = dict(extra)
            for k, x in enumerate(body):
                a.extend([x])
                if k in ex: a.extend([ex[k]])
                elif k >= start and (k - start) % ev == 0 and pre: a.extend(pre.pop(0))
        kf, kg = self.features(aK, 96, 64, 10)
        qf, qg = self.features(aQ, 96, 112, 10)
        for q in range(4): a(f'ds_read_b128 {v(112+4*q)}, v8 offset:{0x3000 + 32*q}')
        paced(kf + kg[0] + kg[2])
        self.stamp(f'_p1.kfeat{l}')
        a(f'{M32} {v(80,16)}, {v(64)}, {ag(SEL0)}, 0')
        a.extend(kg[1])
        a(f'{M32} {v(80,16)}, {v(68)}, {ag(SEL1)}, {v(80,16)}')
        a.extend(kg[3])
        a(f'{M32} {v(16,16)}, {v(72)}, {ag(SEL0)}, 0\n{M32} {v(16,16)}, {v(76)}, {ag(SEL1)}, {v(16,16)}')
        body = [f'v_pk_mul_f32 v[{aV+2*q}:{aV+2*q+1}], v[{aV+2*q}:{aV+2*q+1}], v[{112+2*q}:{113+2*q}]' for q in range(8)]
        body += [f'v_cvt_pk_bf16_f32 v{aV+q}, v{aV+2*q}, v{aV+2*q+1}' for q in range(8)]
        body += [f'v_cvt_pk_bf16_f32 v{64+q}, v{80+2*q}, v{81+2*q}' for q in range(8)]
        body += [f'{M32} {v(112,16)}, {v(64)}, {v(32)}, 0', f'{M32} {v(112,16)}, {v(68)}, {v(36)}, {v(112,16)}']
        body += [f'v_cvt_pk_bf16_f32 v{72+q}, v{16+2*q}, v{17+2*q}' for q in range(8)]
        body += [f'{M32} {v(96,16)}, {v(72)}, {v(32)}, 0', f'{M32} {v(96,16)}, {v(76)}, {v(36)}, {v(96,16)}']
        body += ['v_pk_add_f32 v[8:9], v[80:81], v[82:83]', 'v_pk_add_f32 v[40:41], v[16:17], v[18:19]']
        for k in range(4, 16, 2): body += [f'v_pk_add_f32 v[8:9], v[8:9], v[{80+k}:{81+k}]', f'v_pk_add_f32 v[40:41], v[40:41], v[{16+k}:{17+k}]']
        body += ['v_add_f32 v8, v8, v9', 'v_add_f32 v9, v40, v41', f'v_accvgpr_read_b32 v6, a{aZW}', f'v_accvgpr_read_b32 v7, a{aC4}']
        paced(body)
        a('v_permlane32_swap_b32 v8, v9\nv_cmp_ne_u32 vcc, 0, v7\nv_add_f32 v8, v8, v9')
        a(f'v_accvgpr_read_b32 v7, a{aKVW}\nds_write_b32 v6, v8 offset:4096')
        for i in range(8): a(f'v_cndmask_b32 v{16+i}, v{112+i}, v{120+i}, vcc')
        a(f'ds_write_b128 v7, {v(16)}\nds_write_b128 v7, {v(20)} offset:512')
        for i in range(8): a(f'v_cndmask_b32 v{24+i}, v{96+i}, v{104+i}, vcc')
        a(f'ds_write_b128 v7, {v(24)} offset:2048\nds_write_b128 v7, {v(28)} offset:2560')
        a(f's_lshl_b32 s{sT0}, s{sW}, 10\nv_add_u32 v6, s{sT0}, v{vL16}\nv_add_u32 v7, {LB}, v6\nv_add_u32 v8, {LB + 4096}, v{vL4}')
        a(f's_lshl_b32 s{sT0}, s{sJ}, 4\ns_add_u32 s{sT0}, s{sT0}, s{sR}\ns_lshl_b32 s{sD2}, s{sT0}, 8\ns_add_u32 s{sD2}, s{sD2}, {ZP + l*0x10000}\ns_lshl_b32 s{sT0}, s{sT0}, 12\ns_add_u32 s{sT0}, s{sT0}, {PART + l*0x100000}')
        a(f's_lshl_b32 s{sT1}, s{sW}, 4\ns_mov_b64 s[34:35], 0xffff\ns_lshl_b64 s[34:35], s[34:35], s{sT1}')
        a.extend(qf[:10])
        a.drain(lgkm=True)
        self.stamp(f'_p1.kvlds{l}')
        a('s_barrier')
        for w in range(4): a(f'ds_read_b128 {v(64+4*w)}, v7 offset:{16384*w}')
        a('ds_read2st64_b32 v[80:81], v8 offset0:0 offset1:64\nds_read2st64_b32 v[82:83], v8 offset0:128 offset1:192')
        a.extend(qf[10:22])
        a('v_pk_add_f32 v[64:65], v[64:65], v[68:69]\nv_pk_add_f32 v[66:67], v[66:67], v[70:71]\nv_pk_add_f32 v[72:73], v[72:73], v[76:77]\nv_pk_add_f32 v[74:75], v[74:75], v[78:79]')
        a('v_pk_add_f32 v[64:65], v[64:65], v[72:73]\nv_pk_add_f32 v[66:67], v[66:67], v[74:75]')
        a(f'buffer_store_dwordx4 {v(64)}, v6, s[8:11], s{sT0} offen sc1', 'pub')
        a('v_pk_add_f32 v[80:81], v[80:81], v[82:83]\nv_add_f32 v80, v80, v81\ns_mov_b64 exec, s[34:35]')
        a(f'buffer_store_dword v80, v{vL4}, s[8:11], s{sD2} offen sc1', 'pub')
        a('s_mov_b64 exec, -1')
        self.stamp(f'p1.partial{l}')
        paced(qf[22:] + sum(qg, []))
        a(f's_lshl_b32 s{sT0}, s{sW}, 4\ns_add_u32 s{sT0}, s{sT0}, s{sJ}\ns_lshl_b32 s{sT0}, s{sT0}, 7\ns_add_u32 s{sD2}, s{sT0}, {KVD + l*0x2000}')
        a.wait_tag('pub')
        a('s_barrier')
        self.arrive(sD2)
        self.stamp(f'p1.arrive{l}')
        npre = self.cfg.get('npre1', 4)
        for g in pre[:npre]: a.extend(g)
        self.pre = pre[npre:]
        a(f'v_mov_b32 v64, 0\nv_mov_b32 v65, 0\nv_mov_b32 v66, 0\nv_mov_b32 v67, 0\nds_write_b128 v{vLA}, {v(64)} offset:{ZERO - 0x10000}\nds_write_b128 v{vLA}, {v(64)} offset:{ZERO - 0x10000 + 1024}')
        a(f's_lshl_b32 s{sT0}, s{sJ}, 16\ns_lshl_b32 s{sT1}, s{sW}, 10\ns_add_u32 s{sT0}, s{sT0}, s{sT1}\ns_add_u32 s{sT3}, s{sT0}, {PART + l*0x100000}')
        a(f's_lshl_b32 s{sT0}, s{sJ}, 12\ns_add_u32 s{sT0}, s{sT0}, {ZP + l*0x10000}')
        self.poll([sD2], 16)
        self.stamp(f'o.flag{l}')
        for k in range(4): a(f'buffer_load_dwordx4 {v(16+4*k)}, v{vL16}, s[8:11], s{sT0} offen offset:{1024*k} sc1')
        for r in range(16): a.extend(self.ld(v(32 + 4 * r), sT3, 4096 * r, sT1))
        a(f'v_accvgpr_read_b32 v8, a{aZB}\nv_accvgpr_read_b32 v9, a{aTW}\nv_accvgpr_read_b32 v10, a{aZA}\nv_accvgpr_read_b32 v11, a{aKVA}')
        a('v_pk_add_f32 v[16:17], v[16:17], v[20:21]\nv_pk_add_f32 v[18:19], v[18:19], v[22:23]\nv_pk_add_f32 v[24:25], v[24:25], v[28:29]\nv_pk_add_f32 v[26:27], v[26:27], v[30:31]')
        a('v_pk_add_f32 v[16:17], v[16:17], v[24:25]\nv_pk_add_f32 v[18:19], v[18:19], v[26:27]')
        a('v_permlane32_swap_b32 v16, v18\nv_permlane32_swap_b32 v17, v19\nv_add_f32 v16, v16, v18\nv_add_f32 v17, v17, v19')
        a('v_permlane16_swap_b32 v16, v17\nv_add_f32 v16, v16, v17\nv_cvt_pk_bf16_f32 v16, v16, v16\nds_write_b16 v8, v16')
        for r in range(1, 16):
            a(f'v_pk_add_f32 v[32:33], v[32:33], v[{32+4*r}:{33+4*r}]\nv_pk_add_f32 v[34:35], v[34:35], v[{34+4*r}:{35+4*r}]')
        a('v_cvt_pk_bf16_f32 v32, v32, v33\nv_cvt_pk_bf16_f32 v33, v34, v35\nds_write_b64 v9, v[32:33]')
        a.drain(lgkm=True)
        a('s_barrier')
        self.stamp(f'_o.tot{l}')
        ZSTEP = 16
        for g in range(4): a(f'ds_read_b128 {v(64+4*g)}, v10 offset:{ZSTEP*g}')
        for g in range(4): a(f'ds_read_b128 {v(80+4*g)}, v11 offset:{512*g}')
        a(f's_lshl_b32 s{sT0}, s{sJ}, 11\ns_add_u32 s{sT0}, s{sT0}, s{sXB}\ns_add_u32 s{sT0}, s{sT0}, {OF + l*0x200000}')
        a(f's_lshl_b32 s{sT1}, s{sTB}, 2\ns_lshr_b32 s{sD2}, s{sJ}, 2\ns_add_u32 s{sD2}, s{sD2}, s{sT1}\ns_lshl_b32 s{sD2}, s{sD2}, 7\ns_add_u32 s{sD2}, s{sD2}, {OC + l*0x8000}')
        for g in range(4): a(f'{M32} {v(32,16)}, {v(64+4*g)}, {v(112+4*g)}, {v(32,16) if g else "0"}')
        for g in range(4): a(f'{M32} {v(16,16)}, {v(80+4*g)}, {v(112+4*g)}, {v(16,16) if g else "0"}')
        a('v_add_f32 v32, 0x358637bd, v32\nv_rcp_f32 v32, v32')
        for u in range(2):
            for q in range(4): a(f'v_pk_mul_f32 v[{16+8*u+2*q}:{17+8*u+2*q}], v[{16+8*u+2*q}:{17+8*u+2*q}], v[32:33] op_sel_hi:[1,0]')
            for q in range(4): a(f'v_cvt_pk_bf16_f32 v{40+4*u+q}, v{16+8*u+2*q}, v{17+8*u+2*q}')
            a(f'buffer_store_dwordx4 {v(40+4*u)}, v{vL16}, s[8:11], s{sT0} offen offset:{1024*u} sc1', 'pub')
        self.stamp(f'_o.st{l}')
        a(f's_lshl_b32 s{sT0}, s{sTB2}, 15\ns_lshl_b32 s{sT1}, s{sBLK2}, 11\ns_add_u32 s{sT0}, s{sT0}, s{sT1}\ns_add_u32 s{sT0}, s{sT0}, {X + xi*0x200000}')
        a(f'buffer_load_dwordx4 {v(8)}, v{vL16}, s[8:11], s{sT0} offen sc1\nbuffer_load_dwordx4 {v(12)}, v{vL16}, s[8:11], s{sT0} offen offset:1024 sc1')
        npre = self.cfg.get('npre2', 10)
        for g in self.pre[:npre]: a.extend(g)
        a.wait_tag('pub')
        self.arrive(sD2)
        self.stamp(f'o.arrive{l}')
        for g in self.pre[npre:]: a.extend(g)
        self.npost1 = len(self.pre[npre:])
        a.extend(self.unpack(8, lambda k: 16 + k))

    def red_addr(self, owner_fn):
        a = self.a
        for q in range(1, 4):
            owner_fn(q)
            a(f's_lshl_b32 s{sT0}, s{sT0}, 14\ns_add_u32 s{sT0}, s{sT0}, {LB + (q-1)*4096}\nv_add_u32 v{RA+q-1}, s{sT0}, v{vL16}')
    def red_write(self, q, u, src): return f'ds_write_b128 v{RA+q-1}, {src} offset:{1024*u}'
    def red_finish(self, own):
        a = self.a
        a(f'v_accvgpr_read_b32 v5, a{aOWN}')
        a.drain(lgkm=True)
        a('s_barrier')
        for q in range(3):
            for u in range(4): a(f'ds_read_b128 {v(80 + 16*q + 4*u)}, v5 offset:{4096*q + 1024*u}')
        for q in range(3):
            for k in range(0, 16, 2): a(f'v_pk_add_f32 v[{own+k}:{own+k+1}], v[{own+k}:{own+k+1}], v[{80+16*q+k}:{81+16*q+k}]')
    def tile_out(self, sx, sst, vaddr, srd_, off2, sc):
        a = self.a
        for u in range(2):
            for q in range(4): a(f'v_cvt_pk_bf16_f32 v{32+4*u+q}, v{16+8*u+2*q}, v{17+8*u+2*q}')
            a(f'buffer_store_dwordx4 {v(32+4*u)}, v{vaddr}, s[{srd_}:{srd_+3}], s{sx} offen offset:{off2*u}{sc}', 'pub')
        if sst is not None:
            a('v_pk_add_f32 v[40:41], v[16:17], v[18:19]\nv_pk_mul_f32 v[42:43], v[16:17], v[16:17]\nv_pk_fma_f32 v[42:43], v[18:19], v[18:19], v[42:43]')
            for k in range(4, 16, 2): a(f'v_pk_add_f32 v[40:41], v[40:41], v[{16+k}:{17+k}]\nv_pk_fma_f32 v[42:43], v[{16+k}:{17+k}], v[{16+k}:{17+k}], v[42:43]')
            a('v_add_f32 v40, v40, v41\nv_add_f32 v41, v42, v43\nv_permlane32_swap_b32 v40, v41\nv_add_f32 v40, v40, v41')
            a(f'buffer_store_dword v40, v6, s[8:11], s{sst} offen sc1', 'pub')
    def tile_addr(self, tb, blk, xi):
        self.a(f's_lshl_b32 s{sT0}, s{tb}, 15\ns_lshl_b32 s{sT1}, s{blk}, 11\ns_add_u32 s{sT0}, s{sT0}, s{sT1}\ns_add_u32 s{sT0}, s{sT0}, {X + xi*0x200000}')
        self.a(f'v_accvgpr_read_b32 v6, a{aST4}\ns_lshl_b32 s{sT2}, s{tb}, 12\ns_lshl_b32 s{sT1}, s{blk}, 8\ns_add_u32 s{sT2}, s{sT2}, s{sT1}\ns_add_u32 s{sT2}, s{sT2}, {ST + xi*0x40000}')
    def p2(self, l):
        a = self.a; xi = 2 * l
        self.red_addr(lambda q: a(f's_xor_b32 s{sT0}, s{sW}, {q}'))
        a(f's_lshl_b32 s{sT0}, s{sTB2}, 2\ns_add_u32 s{sT0}, s{sT0}, s{sW}\ns_lshl_b32 s{sT0}, s{sT0}, 7\ns_add_u32 s{sD2}, s{sT0}, {OC + l*0x8000}')
        a(f's_lshl_b32 s{sT3}, s{sTB2}, 15\ns_lshl_b32 s{sT1}, s{sW}, 13\ns_add_u32 s{sT3}, s{sT3}, s{sT1}\ns_add_u32 s{sT3}, s{sT3}, {OF + l*0x200000}')
        self.poll([sD2], 4)
        self.stamp(f'p2.flag{l}')
        for s in range(8): a.extend(self.ld(v(80 + 4 * s), sT3, 1024 * s, sT1))
        w4 = [self.ld(ag(4 * e), sW4, 1024 * e, sT1) for e in range(56)] if l == 0 else []
        nw4 = self.cfg.get('nw4p2', 20)
        pf = w4[56 - nw4:]; self.left = w4[:56 - nw4]
        self.tile_addr(sTB2, sBLK2, xi + 1)
        seq = [(s, q) for s in range(4) for q in range(4)] + [(s, q) for q in (1, 2, 3, 0) for s in range(4, 8)]
        ins = {}
        def put(n, x): ins.setdefault(n, []).extend(x if isinstance(x, list) else [x])
        for k in range(8): put(23 + k, self.red_write(1 + k // 4, k % 4, v(32 + 4 * k)))
        for k, g in enumerate(pf[:12]): put(2 * k + 1, g)
        for n, (s, q) in enumerate(seq):
            ac = v(16 + 16 * q, 16)
            a(f'{M32} {ac}, {v(XR + 16*s + 4*q)}, {v(80 + 4*s)}, {ac if (s or q == 0) else "0"}')
            a.extend(ins.get(n, []))
        a.extend(weave([[self.red_write(3, u, v(64 + 4 * u))] for u in range(4)], pf[12:16]))
        self.stamp(f'p2.mfma{l}')
        a.wait_tag('w3a')
        self.red_finish(16)
        self.tile_out(sT0, sT2, vL16, 8, 1024, ' sc1')
        a(f's_lshl_b32 s{sD3}, s{sW}, 13\ns_add_u32 s{sD3}, s{sD3}, s{sW3}')
        post = sum([self.dma4(sL16K, LB + 4096 * b, sD3, LB + 32768 * (b >> 1) + 4096 * (b & 1), f'w3b{b >> 1}') for b in range(4)], [])
        for g in post[:8]: a.extend(g)
        a(f's_lshl_b32 s{sT0}, s{sTB2}, 7\ns_add_u32 s{sT0}, s{sT0}, {X1C + l*0x2000}')
        a.wait_tag('pub')
        self.arrive(sT0)
        self.stamp(f'p2.arrive{l}')
        for g in pf[16:]: a.extend(g)
        npost = self.cfg.get('npost2', 8)
        for g in post[8:npost]: a.extend(g)
        self.left34 = post[npost:]

    def hreg(self, e): return XR + 4 * e if e < 32 else (80 + 4 * (e - 32) if e < 44 else XR + 4 * (e - 44))
    def hslot(self, k):
        if k < 40: return k >> 1, k & 1
        return (20 + k - 40, 1) if k < 48 else (20 + k - 48, 0)
    def hl(self, k):
        idx, b = self.hslot(k); i, jj = idx >> 2, idx & 3
        return self.ld(v(self.hreg(k)), (sHL0, sHL1)[b], 1024 * (7 * jj + i), sT1)
    def p3(self, l):
        a = self.a; xi = 2 * l + 1; NX0 = 14; WB = 64; PD = 7
        a(f's_lshl_b32 s{sT0}, s{sTB}, 7\ns_add_u32 s{sD2}, s{sT0}, {X1C + l*0x2000}')
        a(f's_add_u32 s{sT3}, s{sXB}, {X + xi*0x200000}')
        a(f's_mul_i32 s{sT0}, s{sTB}, 112\ns_mul_i32 s{sT2}, s{sJ}, 7\ns_add_u32 s{sT0}, s{sT0}, s{sT2}\ns_lshl_b32 s{sT0}, s{sT0}, 10\ns_add_u32 s34, s{sT0}, {H + l*0x700000}\ns_add_u32 s35, s34, 4096')
        a(f's_lshl_b32 s{sT0}, s{sTB}, 2\ns_lshr_b32 s{sT1}, s{sJ}, 2\ns_add_u32 s{sT0}, s{sT0}, s{sT1}\ns_lshl_b32 s{sT0}, s{sT0}, 7\ns_add_u32 s{sHA}, s{sT0}, {HC + l*0x8000}')
        a(f's_and_b32 s{sT0}, s{sTB4}, -2\ns_lshl_b32 s{sT0}, s{sT0}, 2\ns_add_u32 s{sT0}, s{sT0}, s{sW}\ns_lshl_b32 s{sT0}, s{sT0}, 7\ns_add_u32 s{sHC}, s{sT0}, {HC + l*0x8000}')
        a(f's_add_u32 s{sHC2}, s{sHC}, 512')
        for (sb, tb) in ((sHL0, sTBA), (sHL1, sTBB)):
            a(f's_mul_i32 s{sb}, s{tb}, 112\ns_mul_i32 s{sT1}, s{sW}, 28\ns_add_u32 s{sb}, s{sb}, s{sT1}\ns_lshl_b32 s{sb}, s{sb}, 10\ns_add_u32 s{sb}, s{sb}, {H + l*0x700000}')
        a(f's_lshl_b32 s36, s{sTB4}, 15\ns_lshl_b32 s{sT1}, s{sBLK4}, 11\ns_add_u32 s36, s36, s{sT1}\ns_add_u32 s36, s36, {X + xi*0x200000}')
        a(f's_add_u32 s{sT2}, s{sW3}, s{sL4K}')
        acc = [16, 32, 48, 104, 16, 32, 104]
        order = [(i, s) for s in range(32) for i in range(3)] + [(i, s) for i in range(3, 7) for s in range(32)]
        def where(i, s):
            if i < 3: return 32768 * i + 1024 * s
            if i < 5: return LB + 16384 * (s >> 3) + 8192 * (i - 3) + 1024 * (s & 7)
            if i == 5: return 32768 * (s >> 4) + 1024 * (s & 15)
            return 65536 + 1024 * s if s < 16 else 1024 * s
        rd = lambda n: f'ds_read_b128 {v(WB + 4*(n%8))}, {self.lds(where(*order[n]))}'
        for n in range(PD): a(rd(n))
        self.poll([sD2], 16)
        self.stamp(f'p3.flag{l}')
        for s in range(NX0): a.extend(self.xload(xi, s))
        def epi(i):
            b = acc[i]; d = 96 + 4 * (i % 2); o = []
            for q in range(4):
                for k in (2 * q, 2 * q + 1):
                    o += [f'v_mul_f32 v{b+k}, v{b+k}, v5', f'v_mul_f32 v{b+k}, v{b+k}, v{b+8+k}']
                o.append(f'v_cvt_pk_bf16_f32 v{d+q}, v{b+2*q}, v{b+2*q+1}')
            if 'hs' not in self.cfg.get('drop', ''): o.append((f'buffer_store_dwordx4 {v(d)}, v{vL16}, s[8:11], s{34 if i < 4 else 35} offen offset:{1024*(i%4)} sc1', f'h{i}'))
            if 'ep' in self.cfg.get('drop', ''): o = o[-1:]
            return o
        c = self.cfg
        ins = {}
        def put(n, x): ins.setdefault(n, []).extend(x if isinstance(x, list) else [x])
        for s in range(NX0, 32): put(3 * (s - NX0), self.xload(xi, s))
        put(4, self.stat_loads(xi))
        rs = [f'v_accvgpr_read_b32 v9, a{aBP}'] + self.rstd() + ['ds_bpermute_b32 v5, v9, v96']
        for k, x in enumerate(rs): put(36 + k, x)
        put(36 + len(rs) + 8, 'v_mul_f32 v5, v5, v5')
        S5 = 5 * 32768
        dA = self.dma4(sL4K, 0, sT2, S5, 'w3c') + self.dma4(sL4K, 32768, sT2, S5 + 16384, 'w3c') + self.dma4(sL4K, 65536, sT2, S5 + 32768, 'w3c')
        dB = self.dma4(sL4K, 16384, sT2, S5 + 49152, 'w3d')
        res = [[f'buffer_load_dwordx4 {v(8)}, v{vL16}, s[8:11], s36 offen sc1'], [f'buffer_load_dwordx4 {v(12)}, v{vL16}, s[8:11], s36 offen offset:1024 sc1']]
        put(48, [('wait_tag', 'w3b0'), 's_barrier'])
        step = c.get('step3', 25) / 10.0
        pos = 54.0
        for g in self.left34 + dA + res: put(int(pos), g); pos += 2.0
        assert not self.left34 or 54 + 2 * len(self.left34) < 80
        put(101, [('wait_tag', 'w3b1'), 's_barrier'])
        for k, g in enumerate(dB): put(102 + k, g)
        pos = max(pos, 108.0)
        for g in self.left: put(int(pos), g); pos += step
        self.w4_end = pos
        put(151, [('wait_tag', 'w3d'), 's_barrier'])
        ep = epi(0) + epi(1) + epi(2)
        for k, x in enumerate(ep): put(98 + k // 3 + (4 if k >= 12 else 0), x)
        for i in range(3, 7):
            for k, x in enumerate(epi(i)): put(96 + 32 * (i - 2) + 3 + k // 2, x)
        for k, x in enumerate(self.unpack(8, lambda k: 16 + k)): put(192 + k, x)
        last = [2, 4, 6]; first_k = [0, 24, 40, 56]
        arr = [c.get('arrA', 172), c.get('arrB', 226), c.get('arrC', 270)]
        chk = [c.get('chkA', 188), c.get('chkB', 240), c.get('chkC', 284)]
        use = [c.get('useA', 204), c.get('useB', 254), c.get('useC', 298)]
        pace = [2, 2, 1]
        seq = [(idx, b) for idx in range(20) for b in range(2)] + [(idx, 1) for idx in range(20, 28)] + [(idx, 0) for idx in range(20, 28)]
        for g in range(3):
            put(arr[g], [('wait_tag', f'h{last[g]}')] + self.arrive_l(sHA, 1 << (8 * g)))
            put(chk[g], self.peek([sHC, sHC2]))
            put(use[g], self.settle([sHC, sHC2], 4, g))
            for k in range(first_k[g], first_k[g + 1]):
                n = use[g] + pace[g] * (k - first_k[g])
                need = 224 + 2 * seq.index(self.hslot(k))
                n = min(n, need - 1)
                assert n >= use[g] and (k >= 32 or n >= 192 + k)
                put(n, self.hl(k))
        put(223, ['s_barrier'])
        self.extra = []
        if l == 0:
            for b in range(6): self.extra += self.dma4(sL4K, 16384 * b, sW1, W1 + 16384 * b, 'w1')
            nin = c.get('w1in', 10)
            for k, g in enumerate(self.extra[:nin]): put(min(use[2] + 17 + 2 * k, 335), g)
            self.extra = self.extra[nin:]
        self.a = tmp = Asm(); self.red_addr(lambda q: tmp(f's_xor_b32 s{sT0}, s{sW}, {q}')); self.a = a
        for k, x in enumerate(tmp.items): put(224 + 90 + k // 2, [x])
        for k in range(8): put(224 + 99 + k, self.red_write(2 + k // 4, k % 4, v(48 + 4 * k)))
        reg = {self.hslot(k): self.hreg(k) for k in range(56)}
        for n, (i, s) in enumerate(order):
            cc = v(acc[i], 16) if s else '0'
            a(f'{M32} {v(acc[i],16)}, {v(WB + 4*(n%8))}, {v(XR+4*s)}, {cc}')
            if n + PD < len(order): a(rd(n + PD))
            a.extend(ins.get(n, []))
            if n in (0, 47, 95, 127, 159, 191): self.stamp(f'_p3.n{n}.{l}')
        self.stamp(f'p3.mfma{l}')
        n = 224
        for (idx, b) in seq:
            for t in range(2):
                q = t + 2 * b; ac = v(16 + 16 * q, 16)
                a(f'{M32} {ac}, {ag(8*idx + 4*t)}, {v(reg[(idx, b)])}, {ac if (idx or q == 0) else "0"}')
                a.extend(ins.get(n, []))
                if (n - 224) % 16 == 15: self.stamp(f'_p4.n{n}.{l}')
                n += 1

    def p4(self, l):
        a = self.a; extra = self.extra
        self.stamp(f'p4.mfma{l}')
        if l == 0: self.tile_addr(sTB4, sBLK4, 2)
        else: a(f'v_accvgpr_read_b32 v7, a{aOUT}\ns_lshl_b32 s{sT0}, s{sTB4}, 15\ns_lshl_b32 s{sT1}, s{sBLK4}, 6\ns_add_u32 s{sT0}, s{sT0}, s{sT1}')
        for u in range(4): a(self.red_write(1, u, v(32 + 4 * u)))
        self.red_finish(16)
        if l == 0:
            self.tile_out(sT0, sT2, vL16, 8, 1024, ' sc1')
            for g in extra: a.extend(g)
            a(f's_lshl_b32 s{sT0}, s{sTB4}, 7\ns_add_u32 s{sT0}, s{sT0}, {X2C}')
            a.wait_tag('pub')
            self.arrive(sT0)
        else:
            self.tile_out(sT0, None, 7, 12, 32, '')
        self.stamp(f'p4.end{l}')

    def finish(self):
        a = self.a
        if self.cfg.get('diag'):
            a('s_memrealtime s[58:59]\ns_waitcnt vmcnt(0) lgkmcnt(0)')
            a(f's_lshl_b32 s{sT0}, s2, 2\ns_add_u32 s{sT0}, s{sT0}, s{sW}\ns_lshl_b32 s{sT0}, s{sT0}, 8\ns_add_u32 s{sT0}, s{sT0}, {DBG}\nv_mov_b32 v6, 0\ns_mov_b64 exec, 1')
            vals = [56, 58] + [62 + k for k in range(self.nstamp)]
            for k, s in enumerate(vals):
                a(f'v_mov_b32 v7, s{s}\nbuffer_store_dword v7, v6, s[8:11], s{sT0} offen offset:{4*k}')
        a(f's_or_b32 s{sT0}, s2, s{sW}\ns_cmp_lg_u32 s{sT0}, 0\ns_cbranch_scc1 L_exit\ns_mov_b32 s{sT0}, {NW}\nv_mov_b32 v8, 0\nv_mov_b32 v9, s{sNO}\ns_mov_b64 exec, 1')
        a(f'buffer_store_dword v9, v8, s[8:11], s{sT0} offen sc1\nL_exit:\ns_endpgm\nL_code_end:')
        return a.finish()

def gen_main(name, cfg):
    g = Gen(name, cfg)
    g.init()
    stop = cfg.get('stop', 99); n = 0
    for l in range(2):
        for ph in (g.p1, g.p2, g.p3, g.p4):
            g.l = l
            if n < stop: ph(l)
            n += 1
    txt = g.finish()
    return txt, g
```

```python
import re

REG = re.compile(r'^(-|abs\()?([vas])(\d+|\[(\d+):(\d+)\])\)?$')

def regs_of(op):
    op = op.strip()
    if op in ('vcc', 'vcc_lo', 'vcc_hi'): return {('s', 'vcc')}
    if op in ('exec', 'exec_lo', 'exec_hi'): return {('s', 'exec')}
    if op == 'm0': return {('s', 'm0')}
    m = REG.match(op)
    if not m: return set()
    k = m.group(2)
    if m.group(4) is not None:
        return {(k, i) for i in range(int(m.group(4)), int(m.group(5)) + 1)}
    return {(k, int(m.group(3)))}

TRANS = ('v_exp_f32', 'v_log_f32', 'v_rcp_f32', 'v_rsq_f32', 'v_sqrt_f32', 'v_sin_f32', 'v_cos_f32')
RMW = ('v_fmac_f32', 'v_dot2c_f32_bf16', 'v_pk_fmac')

class Ins:
    def __init__(self, text, tag=None):
        self.text = text; self.tag = tag
        t = text.split(';')[0].strip()
        self.label = t.endswith(':')
        self.directive = t.startswith('.')
        parts = t.split(None, 1)
        self.op = parts[0] if parts else ''
        rest = parts[1] if len(parts) > 1 else ''
        dpp = 'row_' in rest
        rest = re.split(r'\s(?:op_sel|op_sel_hi|neg_lo|neg_hi|row_ror):', rest)[0]
        ops = [x.strip() for x in rest.split(',')] if rest else []
        mods = ''
        if ops:
            sp = ops[-1].split(None, 1)
            ops[-1] = sp[0] if sp else ''
            mods = sp[1] if len(sp) > 1 else ''
        if dpp: mods += ' row_'
        self.ops = ops; self.mods = mods
        op = self.op
        self.mfma = op.startswith('v_mfma')
        self.valu = op.startswith('v_') and not self.mfma
        self.vmem = op.startswith('buffer_') or op.startswith('global_')
        self.ds = op.startswith('ds_')
        self.smem = op.startswith(('s_load', 's_memtime', 's_memrealtime', 's_atomic'))
        self.trans = any(op.startswith(x) for x in TRANS)
        self.lds_dma = self.vmem and re.search(r'\blds\b', mods) is not None
        R = [regs_of(o) for o in ops]
        U = lambda l: set().union(*l) if l else set()
        self.w = set(); self.r = set(); self.mem_dst = set(); self.store_data = set()
        self.srcc = set(); self.srcab = set()
        if self.label or self.directive or not op:
            pass
        elif self.mfma:
            self.w = R[0]; self.r = U(R[1:]); self.srcab = R[1] | R[2]; self.srcc = R[3]
            self.passes = 8 if '32x32x16' in op else 4
        elif self.valu:
            if op.startswith('v_permlane') and 'swap' in op:
                self.w = R[0] | R[1]; self.r = R[0] | R[1]
            elif op.startswith('v_cmp'):
                self.w = R[0]; self.r = U(R[1:])
            elif op.startswith(('v_add_co', 'v_sub_co', 'v_addc_co', 'v_subb_co')):
                self.w = R[0] | R[1]; self.r = U(R[2:])
            else:
                self.w = R[0]; self.r = U(R[1:])
                if any(op.startswith(x) for x in RMW): self.r |= R[0]
                if op.startswith('v_cndmask') and len(ops) == 3: self.r |= {('s', 'vcc')}
        elif self.vmem:
            if self.lds_dma:
                self.r = U(R) | {('s', 'm0')}
            elif '_load' in op:
                self.mem_dst = R[0]; self.r = U(R[1:])
                if 'd16' in op: self.r |= R[0]
            else:
                self.r = U(R); self.store_data = R[0]
                if 'atomic' in op and re.search(r'\bsc0\b', mods): self.mem_dst = R[0]
        elif self.ds:
            if op.startswith(('ds_read', 'ds_bpermute', 'ds_permute', 'ds_swizzle')):
                self.mem_dst = R[0]; self.r = U(R[1:])
            else:
                self.r = U(R)
        elif self.smem:
            self.mem_dst = R[0]; self.r = U(R[1:])
            if op.startswith('s_atomic'): self.r |= R[0]
        elif op.startswith('s_'):
            if op.startswith(('s_cmp', 's_cbranch', 's_branch', 's_waitcnt', 's_barrier', 's_nop', 's_endpgm', 's_sleep', 's_setprio', 's_setpc', 's_bitcmp')):
                self.r = U(R)
                if 'vcc' in op: self.r |= {('s', 'vcc')}
                if 'exec' in op: self.r |= {('s', 'exec')}
            else:
                self.w = R[0]; self.r = U(R[1:])
                if 'saveexec' in op: self.w |= {('s', 'exec')}; self.r |= {('s', 'exec')}
        self.wide_store = self.vmem and not self.lds_dma and ('_store_dwordx4' in op or '_store_dwordx3' in op)

class Asm:
    def __init__(self):
        self.items = []
    def __call__(self, text, tag=None):
        for line in text.split('\n'):
            line = line.strip()
            if line: self.items.append(Ins(line, tag))
    def wait_tag(self, tag):
        self.items.append(('wait_tag', tag))
    def drain(self, vm=False, lgkm=False):
        self.items.append(('drain', vm, lgkm))
    def forget(self):
        self.items.append(('forget',))
    def extend(self, lst):
        for x in lst:
            if isinstance(x, str): self(x)
            elif isinstance(x, tuple) and x and x[0] in ('wait_tag', 'drain', 'forget'): self.items.append(x)
            elif isinstance(x, tuple): self(x[0], x[1])
            else: self.items.append(x)

    def finish(self):
        out = []
        vmq = []; lgq = []
        hist = []
        stats = {'nop': 0, 'wait': 0}; snaps = {}; seen = set()
        def emit(text):
            out.append('    ' + text)
        def push(ins):
            hist.append(ins)
            if len(hist) > 24: hist.pop(0)
        def do_wait(vm=None, lg=None):
            nonlocal vmq, lgq
            parts = []
            if vm is not None and vm < len(vmq):
                assert vm <= 63
                parts.append(f'vmcnt({vm})'); vmq = vmq[len(vmq) - vm:] if vm else []
            if lg is not None and lg < len(lgq):
                tgt = len(lgq) - 1 - lg
                if lg == 0 or lgq[tgt][1]:
                    parts.append('lgkmcnt(0)'); lgq = []
                else:
                    n = sum(1 for e in lgq[tgt + 1:] if not e[1])
                    parts.append(f'lgkmcnt({n})')
                    lgq = [] if n == 0 else [e for e in lgq[:tgt + 1] if e[1]] + lgq[tgt + 1:]
            if parts:
                t = 's_waitcnt ' + ' '.join(parts); emit(t); push(Ins(t)); stats['wait'] += 1
        def need(q, regs):
            for i in range(len(q) - 1, -1, -1):
                if q[i][0] & regs: return len(q) - 1 - i
            return None
        for it in self.items:
            if isinstance(it, tuple):
                if it[0] == 'forget':
                    vmq = []; lgq = []
                elif it[0] == 'wait_tag':
                    n = None
                    for i in range(len(vmq) - 1, -1, -1):
                        if vmq[i][2] == it[1]: n = len(vmq) - 1 - i; break
                    do_wait(vm=n)
                else:
                    do_wait(vm=0 if it[1] else None, lg=0 if it[2] else None)
                continue
            ins = it
            if ins.label or ins.directive:
                if ins.label and ins.text.strip()[:-1] in snaps: hist[:] = snaps.pop(ins.text.strip()[:-1])
                if ins.label: seen.add(ins.text.strip()[:-1])
                out.append(ins.text); continue
            if ins.op == 's_waitcnt' and 'vslow path' in ins.text:
                vmq.pop()
                emit('s_waitcnt vmcnt(0)'); push(ins); continue
            if ins.op == 's_waitcnt' and 'slow path' in ins.text:
                lgq = []
                emit('s_waitcnt lgkmcnt(0)'); push(ins); continue
            if ins.op == 's_waitcnt':
                m = re.search(r'vmcnt\((\d+)\)', ins.text);
                if m: n = int(m.group(1)); vmq = vmq[len(vmq) - n:] if n < len(vmq) and n else ([] if n == 0 else vmq)
                m = re.search(r'lgkmcnt\((\d+)\)', ins.text)
                if m: n = int(m.group(1)); lgq = lgq[len(lgq) - n:] if n < len(lgq) and n else ([] if n == 0 else lgq)
                emit(ins.text); push(ins); continue
            touched = ins.r | ins.w | ins.mem_dst
            vm = need(vmq, touched); lg = need(lgq, touched)
            if ins.vmem and len(vmq) >= 62: vm = min(vm, 61) if vm is not None else 61
            if (ins.ds or ins.smem) and len(lgq) >= 14:
                k = next((i for i, e in enumerate(lgq) if not e[1]), len(lgq) - 1)
                lg = min(lg, len(lgq) - 1 - k) if lg is not None else len(lgq) - 1 - k
            do_wait(vm, lg)
            req = 0
            for d, p in enumerate(reversed(hist)):
                n = 0
                vw = {x for x in p.w if x[0] in 'va'}
                sw = {x for x in p.w if x[0] == 's'}
                if p.mfma:
                    big = 12 if p.passes == 8 else 8
                    if ins.mfma:
                        if vw & ins.srcab: n = max(n, big)
                        if vw & ins.srcc and not (vw == ins.srcc and p.passes == ins.passes): n = max(n, big - 2)
                        if vw & ins.w and not (vw & ins.srcc): n = max(n, big)
                    elif (ins.valu or ins.vmem or ins.ds) and (vw & touched): n = max(n, big)
                    if ins.valu and (p.srcc & ins.w): n = max(n, 7 if p.passes == 8 else 3)
                    if (ins.vmem or ins.ds) and (p.srcc & ins.mem_dst): n = max(n, 7 if p.passes == 8 else 3)
                elif p.valu:
                    if ins.mfma and (vw & ins.r): n = max(n, 2)
                    if ins.mfma and ('s', 'exec') in sw: n = max(n, 4)
                    if ins.op.startswith('v_permlane') and (vw & ins.r): n = max(n, 2)
                    if 'dpp' in ins.mods or 'row_' in ins.mods or 'quad_perm' in ins.mods:
                        if vw & ins.r: n = max(n, 2)
                    if ins.op.startswith(('v_readlane', 'v_readfirstlane')) and (vw & ins.r): n = max(n, 1)
                    if p.trans and ins.valu and not ins.trans and (vw & ins.r): n = max(n, 1)
                    if p.trans and ins.trans and (vw & ins.r): n = max(n, 1)
                    if ins.vmem and (sw & ins.r): n = max(n, 5)
                    if ins.valu and (sw & ins.r): n = max(n, 2)
                    if ins.op.startswith('s_') and (sw & ins.r): n = max(n, 1)
                elif p.wide_store:
                    if p.store_data & (ins.w | ins.mem_dst): n = max(n, 2)
                elif ('s', 'm0') in sw:
                    if ins.lds_dma: n = max(n, 1)
                req = max(req, n - d)
            while req > 0:
                k = min(req, 16)
                emit(f's_nop {k-1}'); stats['nop'] += k
                for _ in range(k): push(Ins('s_nop 0'))
                req -= k
            emit(ins.text.split(';')[0].rstrip())
            if ins.op == 's_nop':
                for _ in range(int(ins.ops[0]) + 1): push(Ins('s_nop 0'))
            else:
                push(ins)
            if ins.op.startswith('s_cbranch') and ins.ops[0] not in seen and ins.ops[0] not in snaps:
                snaps[ins.ops[0]] = list(hist)
            if 'untracked' in ins.text: continue
            if ins.vmem: vmq.append((ins.mem_dst, False, ins.tag))
            if ins.ds: lgq.append((ins.mem_dst, False, ins.tag))
            if ins.smem:
                lgq.append((ins.mem_dst, True, ins.tag))
        self.stats = stats
        return '\n'.join(out) + '\n'

def weave(main, fill, start=0, every=1, per=1):
    out = []; fi = 0
    for i, m in enumerate(main):
        out.extend(m if isinstance(m, list) else [m])
        if i >= start and (i - start) % every == 0:
            for _ in range(per):
                if fi < len(fill):
                    f = fill[fi]; out.extend(f if isinstance(f, list) else [f]); fi += 1
    for f in fill[fi:]:
        out.extend(f if isinstance(f, list) else [f])
    return out
```

```python
import re
from asmlib import Asm, weave
from layout import *
from prep import srd, onehot
import prep2

LB = 0x18000
TIMEOUT = 1 << 16
M32 = 'v_mfma_f32_32x32x16_bf16'
M16 = 'v_mfma_f32_16x16x32_bf16'
vL16, vLA, vLC, vL4 = 1, 2, 3, 4
XR = 128
SEL0, SEL1 = 248, 252
aKVW, aZW, aRSW, aRSV, aBP, aST4, aOUT, aOWN, aC4, aTW, aKVA, aZA, aZB, aNCF = range(232, 246)
TOT = LB + 0x3000
ZERO = LB + 0x7000
ZPRIV = 0x3C00
sW, sR, sJ, sTB = 3, 16, 17, 18
sXB, sSTB, sW1, sW3, sW2, sW4, sL4K, sL16K = 20, 21, 22, 23, 24, 25, 26, 27
sTB2, sBLK2, sTB4, sBLK4, sTBA, sTBB = 28, 29, 30, 31, 32, 33
sD, sTO, sT0, sT1, sT2, sT3 = 40, 41, 42, 43, 46, 47
sHC, sHA, sHL0, sHL1, sD2, sD3 = 48, 49, 50, 51, 52, 53
RA = 120
sNO, sFL = 60, 61
sCB, sAV, sHC2, sP0 = 4, 19, 37, 6

PK = [54, 55, 48, 49, 50, 51, 36]
sW3A = 62

def v(a, n=4): return f'v[{a}:{a+n-1}]'
def ag(a, n=4): return f'a[{a}:{a+n-1}]'

class Gen:
    def __init__(self, name, cfg):
        self.a = Asm(); self.name = name; self.cfg = cfg; self.nl = 0; self.nstamp = 0; self.names = []; self.early = []; self.pf = cfg.get('pollfl', 'sc1').replace('+', ' '); self.af = cfg.get('atomfl', 'sc1').replace('+', ' ').replace('none', '')
    def label(self, s):
        self.nl += 1; return f'L_{s}_{self.nl}'
    def stamp(self, name='x'):
        if not self.cfg.get('diag'): return
        if name.startswith('_') and not re.search(self.cfg.get('fine', '^$'), name): return
        if self.cfg.get('only') is not None and not name.endswith(str(self.cfg['only'])): return
        if self.cfg.get('pick') and not re.search(self.cfg['pick'], name): return
        self.names.append(name)
        a = self.a; k = self.nstamp; self.nstamp += 1
        if self.cfg.get('nb'):
            s = (list(range(64, 78, 2)) + list(range(80, 102, 2)))[len(self.early)]
            self.early.append((k, s)); a(f"{'s_memtime' if self.cfg.get('clk') else 's_memrealtime'} s[{s}:{s+1}]"); return
        a(f"{'s_memtime' if self.cfg.get('clk') else 's_memrealtime'} s[44:45]\ns_waitcnt lgkmcnt(0)\nv_writelane_b32 v0, s44, {k + 2}")
    def lds(self, off):
        base = (vL16, vLA, vLC)[off >> 16]
        return f'v{base} offset:{off & 0xffff}'
    def dma4(self, sl, lds_off, sg, g_off, tag):
        first = [f's_add_u32 m0, s{sl}, {lds_off}', f's_add_u32 s{sD}, s{sg}, {g_off}']
        g = []
        for k in range(4):
            ld = (f'buffer_load_dwordx4 v{vL16}, s[8:11], s{sD} offen offset:{1024*k} sc1 lds', tag)
            g.append((first if k == 0 else []) + [ld])
        return g
    def ld(self, dst, sbase, off, st, tag=None, va=vL16, sc=True):
        hi, lo = off & ~0xfff, off & 0xfff
        out = []
        if hi: out.append(f's_add_u32 s{st}, s{sbase}, {hi}'); s = st
        else: s = sbase
        out.append((f'buffer_load_dwordx4 {dst}, v{va}, s[8:11], s{s} offen offset:{lo}' + (' sc1' if sc else ''), tag))
        return out
    def peek(self, offs):
        o = []
        for k, so in enumerate(offs): o += [f's_mov_b32 s{PK[k]}, 0', f's_atomic_add s{PK[k]}, s[{sCB}:{sCB+1}], s{so} glc']
        return o
    def test(self, n, target, field=None):
        o = []
        for k in range(n):
            if field is not None: o.append(f's_bfe_u32 s{PK[k]}, s{PK[k]}, {(8 << 16) | (8 * field)}')
            o.append(f's_xor_b32 s{PK[k]}, s{PK[k]}, {target}')
            if k: o.append(f's_or_b32 s{PK[0]}, s{PK[0]}, s{PK[k]}')
        return o + [f's_cmp_eq_u32 s{PK[0]}, 0']
    def settle(self, offs, target, field=None, nap=0):
        L = self.label('spin'); D = self.label('ok'); t = self.test(len(offs), target, field)
        return t + [f's_cbranch_scc1 {D}', f's_mov_b32 s{sTO}, {TIMEOUT}', f'{L}:'] + ([f's_sleep {nap}'] if nap else []) + self.peek(offs) + ['s_waitcnt lgkmcnt(0) ; slow path'] + t + \
               [f's_cbranch_scc1 {D}', f's_sub_u32 s{sTO}, s{sTO}, 1', f's_cbranch_scc0 {L}', f'{D}:']
    def poll(self, offs, target, nap=0):
        self.a.extend(self.peek(offs) + self.settle(offs, target, nap=nap))
    def arrive_l(self, so, val=1, r=sAV):
        return [f's_mov_b32 s{r}, {val}', f's_atomic_add s{r}, s[{sCB}:{sCB+1}], s{so}']
    def arrive(self, so, val=1):
        self.a.extend(self.arrive_l(so, val))
    def publish(self, so):
        L = self.label('pub')
        return [f's_cmp_lg_u32 s{sW}, 0', f's_cbranch_scc1 {L}', 'v_mov_b32 v8, 0', f'v_mov_b32 v9, s{sNO}', 's_mov_b64 exec, 1',
                f'buffer_store_dword v9, v8, s[8:11], s{so} offen sc1 ; untracked', 's_mov_b64 exec, -1', f'{L}:']
    def vpeek(self, mask):
        return [f's_mov_b64 exec, {mask}', 'v_mov_b32 v9, 0', 'buffer_atomic_add v9, v7, s[8:11], 0 offen sc0 sc1', 's_mov_b64 exec, -1']
    def vsettle(self, mask):
        L = self.label('spin'); D = self.label('ok'); t = [f'v_cmp_ne_u32 vcc, s{sNO}, v9']
        return [f's_mov_b64 exec, {mask}'] + t + [f's_cbranch_vccz {D}', f's_mov_b32 s{sTO}, {TIMEOUT}', f'{L}:', 's_sleep 4', 'v_mov_b32 v9, 0', 'buffer_atomic_add v9, v7, s[8:11], 0 offen sc0 sc1',
                    's_waitcnt vmcnt(0) ; vslow path', 's_nop 0'] + t + [f's_cbranch_vccz {D}', f's_sub_u32 s{sTO}, s{sTO}, 1', f's_cbranch_scc0 {L}', f'{D}:', 's_mov_b64 exec, -1']

    def init(self):
        a = self.a; n = self.name
        prep2.WS_SIZE[0] = WS_END if not self.cfg.get('diag') else DBG + 0x40000
        a(f'.globl {n}\n.p2align 8\n.type {n},@function\n{n}:')
        a('s_cmp_lt_u32 s2, 256\ns_cbranch_scc1 L_main_go\ns_endpgm\nL_main_go:')
        a('s_load_dwordx2 s[32:33], s[0:1], 80\ns_load_dwordx16 s[16:31], s[0:1], 0')
        if self.cfg.get('diag'): a('s_memrealtime s[78:79]')
        a(f'v_lshrrev_b32 v5, 6, v0\nv_readfirstlane_b32 s{sW}, v5')
        if self.cfg.get('codepf', 1):
            a(f's_getpc_b64 s[44:45]\nL_pc:\ns_lshr_b32 s4, s2, 3\ns_lshl_b32 s4, s4, 2\ns_add_u32 s4, s4, s{sW}\ns_min_u32 s4, s4, (L_code_end-L_pc)/1024-1\ns_lshl_b32 s4, s4, 10')
            a('s_add_u32 s44, s44, s4\ns_addc_u32 s45, s45, 0\ns_and_b32 s44, s44, -16\nv_and_b32 v12, 63, v0\nv_lshlrev_b32 v12, 4, v12\nv_mov_b32 v13, s45\nv_add_co_u32 v12, vcc, s44, v12\nv_addc_co_u32 v13, vcc, 0, v13, vcc')
            a('global_load_dwordx4 v[252:255], v[12:13], off')
        a(f's_waitcnt lgkmcnt(0)\ns_add_u32 s54, s32, {NW}\ns_addc_u32 s55, s33, 0\ns_load_dword s{sNO}, s[54:55], 0')
        tg = self.cfg.get('touch', 0)
        if tg:
            a(f's_load_dwordx2 s[6:7], s[0:1], 64\ns_mov_b32 s48, s32\ns_and_b32 s49, s33, 0xffff\ns_mov_b32 s50, {WS_END}\ns_mov_b32 s51, 0x20000')
            a(f'v_lshlrev_b32 v12, {tg}, v0\nv_add_u32 v12, 0x1f80, v12\nv_mov_b32 v251, 0\nbuffer_load_dword v251, v12, s[48:51], 0 offen sc1')
            a(f's_waitcnt lgkmcnt(0)\ns_mov_b32 s48, s6\ns_and_b32 s49, s7, 0xffff\ns_mov_b32 s50, {2048*512*2}\nbuffer_load_dword v250, v12, s[48:51], 0 offen sc1')
        a.forget()
        st = None; fine = self.cfg.get('diag') and 'prep' in self.cfg.get('fine', '')
        def early(name, s):
            self.early.append((self.nstamp, s)); self.names.append(name); self.nstamp += 1
            return f's_memrealtime s[58:59]\ns_waitcnt lgkmcnt(0)\ns_mov_b32 s{s}, s58'
        if fine: st = early('_prep.loaded0', 96)
        prep2.emit_prep(a, stamp=st, l2pf=self.cfg.get('l2pf', 1))
        if fine: a(early('_prep.st0', 97))
        a(f's_load_dwordx2 s[6:7], s[0:1], 64\ns_mov_b64 s[{sCB}:{sCB+1}], s[32:33]\ns_mov_b32 s92, s12\ns_mov_b32 s93, s13\ns_mov_b32 s94, s14\ns_mov_b32 s95, 0x20000')
        a('v_and_b32 v6, 63, v0\nv_lshlrev_b32 v1, 4, v6')
        if self.cfg.get('map', 'B') == 'A':
            a(f's_and_b32 s{sT0}, s2, 7\ns_lshr_b32 s{sT1}, s2, 3\ns_lshr_b32 s{sR}, s{sT1}, 4\ns_lshl_b32 s{sT0}, s{sT0}, 1\ns_add_u32 s{sR}, s{sR}, s{sT0}\ns_and_b32 s{sJ}, s{sT1}, 15')
        else:
            a(f's_and_b32 s{sT0}, s2, 7\ns_lshr_b32 s{sT1}, s2, 3\ns_lshr_b32 s{sR}, s{sT1}, 3\ns_lshr_b32 s{sT2}, s{sT0}, 1\ns_lshl_b32 s{sT2}, s{sT2}, 2\ns_add_u32 s{sR}, s{sR}, s{sT2}')
            a(f's_and_b32 s{sJ}, s{sT1}, 7\ns_and_b32 s{sT0}, s{sT0}, 1\ns_lshl_b32 s{sT0}, s{sT0}, 3\ns_add_u32 s{sJ}, s{sJ}, s{sT0}')
        a(f's_lshl_b32 s{sL4K}, s{sW}, 12\ns_lshl_b32 s{sL16K}, s{sW}, 14')
        a(f's_mul_i32 s{sW1}, s{sJ}, {96*1024}\ns_add_u32 s{sW1}, s{sW1}, s{sL4K}')
        a(f's_lshl_b32 s{sTB}, s{sR}, 2\ns_add_u32 s{sTB}, s{sTB}, s{sW}\ns_lshl_b32 s{sXB}, s{sTB}, 15\ns_lshl_b32 s{sSTB}, s{sTB}, 12')
        a(f's_waitcnt lgkmcnt(0)\ns_add_u32 s{sNO}, s{sNO}, 1')
        self.init2()
        a(f's_mul_i32 s{sT0}, s{sJ}, 7\ns_add_u32 s{sT0}, s{sT0}, 48\ns_lshr_b32 s{sT1}, s{sBLK4}, 1\ns_mul_i32 s{sT1}, s{sT1}, 7\ns_add_u32 s{sT1}, s{sT1}, 153\ns_sub_u32 s{sT2}, s{sJ}, 224')
        a(f'v_and_b32 v6, 63, v0\nv_add_u32 v8, s{sT0}, v6\nv_add_u32 v9, s{sT1}, v6\nv_lshl_add_u32 v10, v6, 4, s{sT2}\nv_cmp_lt_u32 vcc, 6, v6\nv_cndmask_b32 v8, v8, v9, vcc\nv_cmp_lt_u32 vcc, 13, v6\nv_cndmask_b32 v8, v8, v10, vcc')
        a(f'v_lshlrev_b32 v8, 7, v8\nv_add_u32 v8, {FL}, v8\nv_accvgpr_write_b32 a{aNCF}, v8')
        a(f's_and_b32 s{sT0}, s{sJ}, 3\ns_lshl_b32 s{sT0}, s{sT0}, 1\ns_lshl_b32 s{sT1}, s{sW}, 3\ns_add_u32 s{sT0}, s{sT0}, s{sT1}\ns_add_u32 s{sT0}, s{sT0}, 192\ns_lshl_b32 s{sT0}, s{sT0}, 7\ns_add_u32 s98, s{sT0}, {FLX}')
        a('s_add_u32 s99, s98, 4096\ns_add_u32 s100, s98, 128\ns_add_u32 s101, s98, 4224')
        offs = [sT0, sT1, sT2, sT3, sD2, sD3, sD]
        a(f's_and_b32 s{sT0}, s{sJ}, 1\ns_lshl_b32 s{sT0}, s{sT0}, 5\ns_lshr_b32 s{sT1}, s{sJ}, 1\ns_add_u32 s{sT0}, s{sT0}, s{sT1}\ns_lshl_b32 s{sT1}, s{sW}, 3\ns_add_u32 s{sT0}, s{sT0}, s{sT1}')
        a(f's_lshl_b32 s{sT0}, s{sT0}, 7\ns_add_u32 s{sT0}, s{sT0}, {FLX}\ns_add_u32 s{sT1}, s{sT0}, 8192\ns_add_u32 s{sT2}, s{sT0}, 16384')
        a(f's_lshl_b32 s{sT3}, s{sTB}, 9\ns_add_u32 s{sT3}, s{sT3}, {FLX}\ns_add_u32 s{sD2}, s{sT3}, 128\ns_add_u32 s{sD3}, s{sT3}, 256\ns_add_u32 s{sD}, s{sT3}, 384')
        a(f's_lshl_b32 s34, s2, 7\ns_add_u32 s34, s34, {FLX}')
        a('s_waitcnt vmcnt(0)\ns_barrier')
        a.extend(self.publish(34))
        a.forget()
        self.stamp('_prep.pub0')
        prep2.gather(a)
        P = prep2
        for mb in range(4):
            d = 96 + 16 * mb
            a(f'{M32} {v(d,16)}, {ag(P.NCA+8*mb)}, {ag(P.NCB)}, 0\n{M32} {v(d,16)}, {ag(P.NCA+8*mb+4)}, {ag(P.NCB+4)}, {v(d,16)}')
        a(f's_lshl_b32 s34, s{sW}, 8\nv_add_u32 v34, {LB}, v{vL4}\nv_add_u32 v35, s34, v34\nv_pk_add_f32 v[32:33], v[96:97], v[98:99]')
        for r in range(100, 160, 2): a(f'v_pk_add_f32 v[32:33], v[32:33], v[{r}:{r+1}]')
        a('v_add_f32 v32, v32, v33\nv_mov_b32 v33, v32\nv_permlane32_swap_b32 v32, v33\nv_add_f32 v32, v32, v33\nds_write_b32 v35, v32')
        a.drain(lgkm=True)
        a('s_barrier\nds_read2st64_b32 v[36:37], v34 offset0:0 offset1:1\nds_read2st64_b32 v[38:39], v34 offset0:2 offset1:3')
        a(f'v_pk_add_f32 v[36:37], v[36:37], v[38:39]\nv_add_f32 v36, v36, v37\nv_mul_f32 v36, s{P.NCM}, v36')
        a.extend(self.peek(offs))
        for k in range(8):
            s = 96 + 8 * k
            for q in range(4): a(f'v_pk_add_f32 v[{s+2*q}:{s+2*q+1}], v[{s+2*q}:{s+2*q+1}], v[36:37] op_sel_hi:[1,0]')
            for q in range(4): a(f'v_cvt_pk_bf16_f32 v{40+4*k+q}, v{s+2*q}, v{s+2*q+1}')
            a(f'buffer_store_dwordx4 {v(40+4*k)}, v{vL16}, s[{P.NCS}:{P.NCS+3}], s{P.NCD+k} offen sc1')
        self.stamp('_prep.ncst0')
        a.extend(self.settle(offs, f's{sNO}', nap=self.cfg.get('nap0', 2)))
        a('s_barrier')
    def init2(self):
        a = self.a
        srd(a, 12, 6, 2048 * 512 * 2)
        a(f's_mul_i32 s{sW3}, s{sJ}, {224*1024}\ns_add_u32 s{sW3}, s{sW3}, {W3}')
        a(f's_and_b32 s{sT0}, s{sJ}, 3\ns_lshl_b32 s{sT0}, s{sT0}, 2\ns_add_u32 s{sBLK2}, s{sT0}, s{sW}\ns_lshl_b32 s{sW2}, s{sBLK2}, 15\ns_add_u32 s{sW2}, s{sW2}, {W2}')
        a(f's_lshr_b32 s{sT0}, s{sJ}, 2\ns_lshl_b32 s{sTB2}, s{sR}, 2\ns_add_u32 s{sTB2}, s{sTB2}, s{sT0}')
        a(f's_and_b32 s{sT0}, s{sJ}, 7\ns_lshl_b32 s{sT1}, s{sT0}, 2\ns_add_u32 s{sT1}, s{sT1}, s{sW}\ns_mul_i32 s{sW4}, s{sT1}, {56*1024}\ns_add_u32 s{sW4}, s{sW4}, {W4}')
        a(f's_lshl_b32 s{sT0}, s{sT0}, 1\ns_and_b32 s{sT1}, s{sW}, 1\ns_add_u32 s{sBLK4}, s{sT0}, s{sT1}')
        a(f's_lshr_b32 s{sT0}, s{sJ}, 3\ns_lshl_b32 s{sT0}, s{sT0}, 1\ns_lshl_b32 s{sT1}, s{sR}, 2\ns_add_u32 s{sT0}, s{sT0}, s{sT1}')
        a(f's_lshr_b32 s{sT1}, s{sW}, 1\ns_add_u32 s{sTB4}, s{sT0}, s{sT1}\ns_xor_b32 s{sT1}, s{sT1}, 1\ns_add_u32 s{sTBB}, s{sT0}, s{sT1}\ns_mov_b32 s{sTBA}, s{sTB4}')
        a(f'v_add_u32 v{vLA}, 0x10000, v1\nv_add_u32 v{vLC}, 0x20000, v1\nv_lshlrev_b32 v{vL4}, 2, v6')
        a('v_and_b32 v7, 31, v6\nv_lshrrev_b32 v8, 5, v6\nv_bfe_u32 v9, v6, 2, 1\nv_bfe_u32 v10, v6, 3, 1\nv_bfe_u32 v11, v6, 4, 1\nv_and_b32 v12, 3, v6')
        a('v_and_b32 v13, 15, v6\nv_lshrrev_b32 v14, 4, v6')
        a(f's_add_u32 s{sT0}, s{sL16K}, {LB}')
        def park(dst): a(f'v_accvgpr_write_b32 a{dst}, v15')
        a(f'v_lshlrev_b32 v15, 4, v7\nv_lshl_add_u32 v15, v8, 10, v15\nv_add_u32 v15, s{sT0}, v15'); park(aKVW)
        a(f'v_lshl_add_u32 v15, v10, 2, v12\nv_lshl_add_u32 v15, v9, 3, v15\nv_lshl_add_u32 v15, v8, 4, v15\nv_lshl_add_u32 v15, v11, 5, v15\nv_lshlrev_b32 v15, 2, v15\nv_add_u32 v15, s{sT0}, v15'); park(aZW)
        a(f'v_lshl_add_u32 v15, v13, 1, v8\nv_lshlrev_b32 v15, 2, v15\nv_add_u32 v15, s{sT0}, v15'); park(aRSW)
        a(f'v_lshlrev_b32 v15, 4, v8\nv_add_u32 v15, s{sT0}, v15'); park(aRSV)
        a('v_and_b32 v15, 1, v6\nv_lshlrev_b32 v15, 5, v15\nv_lshrrev_b32 v16, 1, v7\nv_add_u32 v15, v15, v16\nv_lshlrev_b32 v15, 2, v15'); park(aBP)
        a('v_lshl_add_u32 v15, v7, 1, v8\nv_lshlrev_b32 v15, 2, v15'); park(aST4)
        a('v_lshlrev_b32 v15, 10, v7\nv_lshl_add_u32 v15, v8, 4, v15'); park(aOUT)
        a(f'v_add_u32 v15, s{sT0}, v1'); park(aOWN)
        a('v_mov_b32 v15, v11'); park(aC4)
        a(f's_lshl_b32 s{sT1}, s{sW}, 9\ns_add_u32 s{sT1}, s{sT1}, {TOT}\nv_lshlrev_b32 v15, 4, v7\nv_lshl_add_u32 v15, v8, 3, v15\nv_add_u32 v15, s{sT1}, v15'); park(aTW)
        a(f'v_cmp_eq_u32 vcc, v9, v8\nv_lshrrev_b32 v16, 3, v7\nv_lshl_add_u32 v16, v16, 2, v12\nv_lshl_add_u32 v16, v8, 4, v16\nv_lshlrev_b32 v16, 4, v16\nv_add_u32 v16, {TOT}, v16')
        a(f'v_mov_b32 v17, {ZERO}\nv_cndmask_b32 v15, v17, v16, vcc'); park(aKVA)
        a(f'v_lshlrev_b32 v16, 6, v8\nv_add_u32 v16, s{sT0}, v16\nv_add_u32 v16, {ZPRIV}, v16\nv_cndmask_b32 v15, v17, v16, vcc'); park(aZA)
        a(f'v_lshl_add_u32 v15, v13, 2, v14\nv_lshlrev_b32 v15, 1, v15\nv_add_u32 v15, s{sT0}, v15\nv_add_u32 v15, {ZPRIV}, v15'); park(aZB)
        a('v_lshl_add_u32 v16, v10, 2, v12\nv_cmp_eq_u32 vcc, v11, v8\nv_cndmask_b32 v17, 0, 1, vcc\nv_and_b32 v18, v17, v9\nv_sub_u32 v17, v17, v18')
        onehot(a, 20, 16, 17, 28); onehot(a, 24, 16, 18, 28)
        for q in range(8): a(f'v_accvgpr_write_b32 a{SEL0+q}, v{20+q}')

    def stat_loads(self, xi):
        out = [f's_add_u32 s{sT0}, s{sSTB}, {ST + xi*0x40000}']
        for i in range(4): out.append(f'buffer_load_dwordx4 {v(96+4*i)}, v{vL16}, s[8:11], s{sT0} offen offset:{1024*i} sc1')
        return out
    def rstd(self):
        o = []
        for k in range(4): o += [f'v_add_f32 v{96+k}, v{96+k}, v{100+k}', f'v_add_f32 v{104+k}, v{104+k}, v{108+k}']
        for k in range(4): o += [f'v_add_f32 v{96+k}, v{96+k}, v{104+k}']
        o += ['v_permlane32_swap_b32 v96, v98', 'v_permlane32_swap_b32 v97, v99', 'v_add_f32 v96, v96, v98', 'v_add_f32 v97, v97, v99',
              'v_permlane16_swap_b32 v96, v97', 'v_add_f32 v96, v96, v97', 'v_mov_b32 v97, v96', 'v_permlane16_swap_b32 v96, v97',
              'v_mul_f32 v96, 0x3b000000, v96', 'v_mul_f32 v97, 0x3b000000, v97', 'v_fma_f32 v97, -v96, v96, v97',
              'v_max_f32 v97, 0, v97', 'v_add_f32 v97, 0x3727c5ac, v97', 'v_rsq_f32 v96, v97']
        return o
    def xload(self, xi, s):
        return self.ld(v(XR + 4 * s), sT3, 1024 * s, sT1)
    def features(self, p, en, dst, t):
        mx, mn = t, t + 1; sp, sn = t + 2, t + 4
        pr = lambda r: f'v[{r}:{r+1}]'
        o = [f'v_max3_f32 v{mx}, v{p}, v{p+1}, v{p+2}', f'v_min3_f32 v{mn}, v{p}, v{p+1}, v{p+2}']
        for k in range(3, 15, 2):
            o += [f'v_max3_f32 v{mx}, v{mx}, v{p+k}, v{p+k+1}', f'v_min3_f32 v{mn}, v{mn}, v{p+k}, v{p+k+1}']
        o += [f'v_max_f32 v{mx}, v{mx}, v{p+15}', f'v_min_f32 v{mn}, v{mn}, v{p+15}']
        o += [f'v_mul_f32 v{mx}, -v5, v{mx}', f'v_mul_f32 v{mn}, v5, v{mn}']
        for k in range(0, 16, 2):
            o += [f'v_pk_fma_f32 {pr(en+k)}, {pr(p+k)}, v[4:5], {pr(t)} op_sel:[0,1,1] op_sel_hi:[1,1,1] neg_lo:[0,1,0] neg_hi:[0,1,0]',
                  f'v_pk_fma_f32 {pr(p+k)}, {pr(p+k)}, v[4:5], {pr(t)} op_sel:[0,1,0] op_sel_hi:[1,1,0]']
            if k: o += [f'v_exp_f32 v{x}, v{x}' for x in (p + k - 2, p + k - 1, en + k - 2, en + k - 1)]
        o += [f'v_exp_f32 v{x}, v{x}' for x in (p + 14, p + 15, en + 14, en + 15)]
        o += [f'v_pk_add_f32 {pr(sp)}, {pr(p)}, {pr(p+2)}', f'v_pk_add_f32 {pr(sn)}, {pr(en)}, {pr(en+2)}']
        for k in range(4, 16, 2):
            o += [f'v_pk_add_f32 {pr(sp)}, {pr(sp)}, {pr(p+k)}', f'v_pk_add_f32 {pr(sn)}, {pr(sn)}, {pr(en+k)}']
        o += [f'v_add_f32 v{sp}, v{sp}, v{sp+1}', f'v_add_f32 v{sn}, v{sn}, v{sn+1}', f'v_rcp_f32 v{sp}, v{sp}', f'v_rcp_f32 v{sn}, v{sn}']
        groups = []
        for (src, sc, d) in ((p, sp, dst), (en, sn, dst + 8)):
            for g in range(2):
                q4 = range(4 * g, 4 * g + 4)
                groups.append([f'v_pk_mul_f32 {pr(src+2*q)}, {pr(src+2*q)}, {pr(sc)} op_sel_hi:[1,0]' for q in q4] +
                              [f'v_cvt_pk_bf16_f32 v{d+q}, v{src+2*q}, v{src+2*q+1}' for q in q4])
        return o, groups
    def unpack(self, src, dst, wr=None):
        o = []
        for q in range(8):
            o += [f'v_lshlrev_b32 v{dst(2*q)}, 16, v{src+q}', f'v_and_b32 v{dst(2*q+1)}, 0xffff0000, v{src+q}']
        return o

    def p1(self, l):
        a = self.a; xi = 2 * l; NX0 = 14; PD = 7
        aK, aV, aQ, WB = 16, 32, 48, 64
        def w1dma(q):
            g = self.dma4(sT2, 24576 * q, sD2, W1U + 24576 * q, f'w1_{q}')
            g2 = self.dma4(sT2, 24576 * q + 4096, sD2, W1U + 24576 * q + 4096, f'w1_{q}')[:2]
            return g + g2
        ins = {}
        def put(n, x): ins.setdefault(n, []).extend(x if isinstance(x, list) else [x])
        a(f's_add_u32 s{sT3}, s{sXB}, {X + xi*0x200000}')
        if l == 0:
            a(f's_mul_i32 s{sT2}, s{sW}, 6144\ns_mul_i32 s{sD2}, s{sJ}, {96*1024}\ns_add_u32 s{sD2}, s{sD2}, s{sT2}')
            self.stamp(f'p1.start{l}')
            a.extend(sum(w1dma(0), []))
            for s in range(8): a.extend(self.xload(xi, s))
            a.extend(sum(w1dma(1), []))
            seq = [self.xload(xi, s) for s in range(8, 16)]
            for q in (2, 3): seq += w1dma(q) + [self.xload(xi, s) for s in range(8 * q, 8 * q + 8)]
            a('v_mov_b32 v5, 0x3fb8aa3b')
            for k, g in enumerate(seq): put(k + (k >> 1), g)
            for q in (1, 2, 3): put(24 * q - PD - 1, [('wait_tag', f'w1_{q}'), 's_barrier'])
            a.wait_tag('w1_0')
            put(16, self.publish(prep2.SJOB))
            put(36, self.peek([98, 99, 100, 101])); put(54, self.settle([98, 99, 100, 101], f's{sNO}'))
            nk = self.cfg.get('nck', 56)
            put(nk, [f'v_accvgpr_read_b32 v7, a{aNCF}', 's_mov_b32 s34, 0x11111', f's_lshl_b32 s34, s34, s{sW}', 's_and_b32 s34, s34, 0x1ffff', 's_mov_b32 s35, 0'] + self.vpeek('s[34:35]'))
            put(95, self.vsettle('s[34:35]'))
            n_w2 = 60
        else:
            a(f's_lshl_b32 s{sT0}, s{sTB}, 7\ns_add_u32 s{sT0}, s{sT0}, {X2C}')
            self.poll([sT0], 16)
            a.wait_tag('w1')
            self.stamp(f'p1.start{l}')
            for s in range(NX0): a.extend(self.xload(xi, s))
            for s in range(NX0, 32): put(3 * (s - NX0), self.xload(xi, s))
            put(4, self.stat_loads(xi))
            n_w2 = 54
        a('s_barrier')
        if l:
            rs = [f'v_accvgpr_read_b32 v7, a{aRSW}', f'v_accvgpr_read_b32 v9, a{aBP}'] + self.rstd() + [f'ds_write_b32 v7, v96 offset:{0x3000}', 'ds_bpermute_b32 v5, v9, v96',
                  f'v_accvgpr_read_b32 v8, a{aRSV}']
            for k, x in enumerate(rs): put(36 + k, x)
            put(92, 'v_mul_f32 v5, 0x3fb8aa3b, v5')
        w2l = [self.ld(v(XR + 4 * s), sW2, 1024 * s, sT1) for s in range(32)]
        nw2 = 0
        for n in range(n_w2, 96, self.cfg.get('w2step', 3)):
            assert 3 * nw2 + 2 <= n
            put(n, w2l[nw2]); nw2 += 1
        rd = lambda n: f'ds_read_b128 {v(WB + 4*(n%8))}, {self.lds(1024*n)}'
        for n in range(PD): a(rd(n))
        for n in range(96):
            s, T = divmod(n, 3); acc = (aK, aV, aQ)[T]; w = v(WB + 4 * (n % 8)); x = v(XR + 4 * s)
            c = v(acc, 16) if s else '0'
            a(f'{M32} {v(acc,16)}, {x}, {w}, {c}' if T == 1 else f'{M32} {v(acc,16)}, {w}, {x}, {c}')
            if n + PD < 96: a(rd(n + PD))
            a.extend(ins.get(n, []))
        self.stamp(f'p1.gemm{l}')
        a('s_barrier')
        a(f's_add_u32 s{sW3A}, s{sW3}, s{sL4K}')
        w3a = sum([self.dma4(sL4K, 16384 * b, sW3A, 16384 * b, 'w3a') for b in range(6)], [])
        pre = w2l[nw2:] + w3a
        ev = self.cfg.get('pace1', 10)
        def paced(body, start=4, extra=()):
            ex = dict(extra)
            for k, x in enumerate(body):
                a.extend([x])
                if k in ex: a.extend([ex[k]])
                elif k >= start and (k - start) % ev == 0 and pre: a.extend(pre.pop(0))
        kf, kg = self.features(aK, 96, 64, 10)
        qf, qg = self.features(aQ, 96, 112, 10)
        if l:
            for q in range(4): a(f'ds_read_b128 {v(112+4*q)}, v8 offset:{0x3000 + 32*q}')
        paced(kf + kg[0] + kg[2])
        self.stamp(f'_p1.kfeat{l}')
        a(f'{M32} {v(80,16)}, {v(64)}, {ag(SEL0)}, 0')
        a.extend(kg[1])
        a(f'{M32} {v(80,16)}, {v(68)}, {ag(SEL1)}, {v(80,16)}')
        a.extend(kg[3])
        a(f'{M32} {v(16,16)}, {v(72)}, {ag(SEL0)}, 0\n{M32} {v(16,16)}, {v(76)}, {ag(SEL1)}, {v(16,16)}')
        body = [f'v_pk_mul_f32 v[{aV+2*q}:{aV+2*q+1}], v[{aV+2*q}:{aV+2*q+1}], v[{112+2*q}:{113+2*q}]' for q in range(8)] if l else []
        body += [f'v_cvt_pk_bf16_f32 v{aV+q}, v{aV+2*q}, v{aV+2*q+1}' for q in range(8)]
        body += [f'v_cvt_pk_bf16_f32 v{64+q}, v{80+2*q}, v{81+2*q}' for q in range(8)]
        body += [f'{M32} {v(112,16)}, {v(64)}, {v(32)}, 0', f'{M32} {v(112,16)}, {v(68)}, {v(36)}, {v(112,16)}']
        body += [f'v_cvt_pk_bf16_f32 v{72+q}, v{16+2*q}, v{17+2*q}' for q in range(8)]
        body += [f'{M32} {v(96,16)}, {v(72)}, {v(32)}, 0', f'{M32} {v(96,16)}, {v(76)}, {v(36)}, {v(96,16)}']
        body += ['v_pk_add_f32 v[8:9], v[80:81], v[82:83]', 'v_pk_add_f32 v[40:41], v[16:17], v[18:19]']
        for k in range(4, 16, 2): body += [f'v_pk_add_f32 v[8:9], v[8:9], v[{80+k}:{81+k}]', f'v_pk_add_f32 v[40:41], v[40:41], v[{16+k}:{17+k}]']
        body += ['v_add_f32 v8, v8, v9', 'v_add_f32 v9, v40, v41', f'v_accvgpr_read_b32 v6, a{aZW}', f'v_accvgpr_read_b32 v7, a{aC4}']
        paced(body, start=self.cfg.get('kstart', 4))
        a('v_permlane32_swap_b32 v8, v9\nv_cmp_ne_u32 vcc, 0, v7\nv_add_f32 v8, v8, v9')
        a(f'v_accvgpr_read_b32 v7, a{aKVW}\nds_write_b32 v6, v8 offset:4096')
        for i in range(8): a(f'v_cndmask_b32 v{16+i}, v{112+i}, v{120+i}, vcc')
        a(f'ds_write_b128 v7, {v(16)}\nds_write_b128 v7, {v(20)} offset:512')
        for i in range(8): a(f'v_cndmask_b32 v{24+i}, v{96+i}, v{104+i}, vcc')
        a(f'ds_write_b128 v7, {v(24)} offset:2048\nds_write_b128 v7, {v(28)} offset:2560')
        a(f's_lshl_b32 s{sT0}, s{sW}, 10\nv_add_u32 v6, s{sT0}, v{vL16}\nv_add_u32 v7, {LB}, v6\nv_add_u32 v8, {LB + 4096}, v{vL4}')
        a(f's_lshl_b32 s{sT0}, s{sJ}, 4\ns_add_u32 s{sT0}, s{sT0}, s{sR}\ns_lshl_b32 s{sD2}, s{sT0}, 8\ns_add_u32 s{sD2}, s{sD2}, {ZP + l*0x10000}\ns_lshl_b32 s{sT0}, s{sT0}, 12\ns_add_u32 s{sT0}, s{sT0}, {PART + l*0x100000}')
        a(f's_lshl_b32 s{sT1}, s{sW}, 4\ns_mov_b64 s[34:35], 0xffff\ns_lshl_b64 s[34:35], s[34:35], s{sT1}')
        a.extend(qf[:10])
        a.drain(lgkm=True)
        self.stamp(f'_p1.kvlds{l}')
        a('s_barrier')
        for w in range(4): a(f'ds_read_b128 {v(64+4*w)}, v7 offset:{16384*w}')
        a('ds_read2st64_b32 v[80:81], v8 offset0:0 offset1:64\nds_read2st64_b32 v[82:83], v8 offset0:128 offset1:192')
        a.extend(qf[10:22])
        a('v_pk_add_f32 v[64:65], v[64:65], v[68:69]\nv_pk_add_f32 v[66:67], v[66:67], v[70:71]\nv_pk_add_f32 v[72:73], v[72:73], v[76:77]\nv_pk_add_f32 v[74:75], v[74:75], v[78:79]')
        a('v_pk_add_f32 v[64:65], v[64:65], v[72:73]\nv_pk_add_f32 v[66:67], v[66:67], v[74:75]')
        a(f'buffer_store_dwordx4 {v(64)}, v6, s[8:11], s{sT0} offen sc1', 'pub')
        a('v_pk_add_f32 v[80:81], v[80:81], v[82:83]\nv_add_f32 v80, v80, v81\ns_mov_b64 exec, s[34:35]')
        a(f'buffer_store_dword v80, v{vL4}, s[8:11], s{sD2} offen sc1', 'pub')
        a('s_mov_b64 exec, -1')
        self.stamp(f'p1.partial{l}')
        paced(qf[22:] + sum(qg, []), start=self.cfg.get('qstart', 4))
        a(f's_lshl_b32 s{sT0}, s{sW}, 4\ns_add_u32 s{sT0}, s{sT0}, s{sJ}\ns_lshl_b32 s{sT0}, s{sT0}, 7\ns_add_u32 s{sD2}, s{sT0}, {KVD + l*0x2000}')
        a.wait_tag('pub')
        a('s_barrier')
        self.arrive(sD2)
        self.stamp(f'p1.arrive{l}')
        npre = self.cfg.get('npre1', 4)
        for g in pre[:npre]: a.extend(g)
        self.pre = pre[npre:]
        a(f'v_mov_b32 v64, 0\nv_mov_b32 v65, 0\nv_mov_b32 v66, 0\nv_mov_b32 v67, 0\nds_write_b128 v{vLA}, {v(64)} offset:{ZERO - 0x10000}\nds_write_b128 v{vLA}, {v(64)} offset:{ZERO - 0x10000 + 1024}')
        a(f's_lshl_b32 s{sT0}, s{sJ}, 16\ns_lshl_b32 s{sT1}, s{sW}, 10\ns_add_u32 s{sT0}, s{sT0}, s{sT1}\ns_add_u32 s{sT3}, s{sT0}, {PART + l*0x100000}')
        a(f's_lshl_b32 s{sT0}, s{sJ}, 12\ns_add_u32 s{sT0}, s{sT0}, {ZP + l*0x10000}')
        self.poll([sD2], 16)
        self.stamp(f'o.flag{l}')
        for k in range(4): a(f'buffer_load_dwordx4 {v(16+4*k)}, v{vL16}, s[8:11], s{sT0} offen offset:{1024*k} sc1')
        for r in range(16): a.extend(self.ld(v(32 + 4 * r), sT3, 4096 * r, sT1))
        for _ in range(min(self.cfg.get('nmid', 0), len(self.pre))): a.extend(self.pre.pop(0))
        a(f'v_accvgpr_read_b32 v8, a{aZB}\nv_accvgpr_read_b32 v9, a{aTW}\nv_accvgpr_read_b32 v10, a{aZA}\nv_accvgpr_read_b32 v11, a{aKVA}')
        a('v_pk_add_f32 v[16:17], v[16:17], v[20:21]\nv_pk_add_f32 v[18:19], v[18:19], v[22:23]\nv_pk_add_f32 v[24:25], v[24:25], v[28:29]\nv_pk_add_f32 v[26:27], v[26:27], v[30:31]')
        a('v_pk_add_f32 v[16:17], v[16:17], v[24:25]\nv_pk_add_f32 v[18:19], v[18:19], v[26:27]')
        a('v_permlane32_swap_b32 v16, v18\nv_permlane32_swap_b32 v17, v19\nv_add_f32 v16, v16, v18\nv_add_f32 v17, v17, v19')
        a('v_permlane16_swap_b32 v16, v17\nv_add_f32 v16, v16, v17\nv_cvt_pk_bf16_f32 v16, v16, v16\nds_write_b16 v8, v16')
        for r in range(1, 16):
            a(f'v_pk_add_f32 v[32:33], v[32:33], v[{32+4*r}:{33+4*r}]\nv_pk_add_f32 v[34:35], v[34:35], v[{34+4*r}:{35+4*r}]')
        a('v_cvt_pk_bf16_f32 v32, v32, v33\nv_cvt_pk_bf16_f32 v33, v34, v35\nds_write_b64 v9, v[32:33]')
        a.drain(lgkm=True)
        a('s_barrier')
        self.stamp(f'_o.tot{l}')
        ZSTEP = 16
        for g in range(4): a(f'ds_read_b128 {v(64+4*g)}, v10 offset:{ZSTEP*g}')
        for g in range(4): a(f'ds_read_b128 {v(80+4*g)}, v11 offset:{512*g}')
        a(f's_lshl_b32 s{sT0}, s{sJ}, 11\ns_add_u32 s{sT0}, s{sT0}, s{sXB}\ns_add_u32 s{sT0}, s{sT0}, {OF + l*0x200000}')
        a(f's_lshl_b32 s{sT1}, s{sTB}, 2\ns_lshr_b32 s{sD2}, s{sJ}, 2\ns_add_u32 s{sD2}, s{sD2}, s{sT1}\ns_lshl_b32 s{sD2}, s{sD2}, 7\ns_add_u32 s{sD2}, s{sD2}, {OC + l*0x8000}')
        for g in range(4): a(f'{M32} {v(32,16)}, {v(64+4*g)}, {v(112+4*g)}, {v(32,16) if g else "0"}')
        for g in range(4): a(f'{M32} {v(16,16)}, {v(80+4*g)}, {v(112+4*g)}, {v(16,16) if g else "0"}')
        a('v_add_f32 v32, 0x358637bd, v32\nv_rcp_f32 v32, v32')
        for u in range(2):
            for q in range(4): a(f'v_pk_mul_f32 v[{16+8*u+2*q}:{17+8*u+2*q}], v[{16+8*u+2*q}:{17+8*u+2*q}], v[32:33] op_sel_hi:[1,0]')
            for q in range(4): a(f'v_cvt_pk_bf16_f32 v{40+4*u+q}, v{16+8*u+2*q}, v{17+8*u+2*q}')
            a(f'buffer_store_dwordx4 {v(40+4*u)}, v{vL16}, s[8:11], s{sT0} offen offset:{1024*u} sc1', 'pub')
        self.stamp(f'_o.st{l}')
        if l:
            a(f's_lshl_b32 s{sT0}, s{sTB2}, 15\ns_lshl_b32 s{sT1}, s{sBLK2}, 11\ns_add_u32 s{sT0}, s{sT0}, s{sT1}\ns_add_u32 s{sT0}, s{sT0}, {X + xi*0x200000}')
            a(f'buffer_load_dwordx4 {v(8)}, v{vL16}, s[8:11], s{sT0} offen sc1\nbuffer_load_dwordx4 {v(12)}, v{vL16}, s[8:11], s{sT0} offen offset:1024 sc1')
        else:
            a(f'v_accvgpr_read_b32 v7, a{aOUT}\ns_lshl_b32 s{sT0}, s{sTB2}, 15\ns_lshl_b32 s{sT1}, s{sBLK2}, 6\ns_add_u32 s{sT0}, s{sT0}, s{sT1}')
            a(f'buffer_load_dwordx4 {v(8)}, v7, s[92:95], s{sT0} offen\nbuffer_load_dwordx4 {v(12)}, v7, s[92:95], s{sT0} offen offset:32')
        npre = self.cfg.get('npre2', 0)
        for g in self.pre[:npre]: a.extend(g)
        a.wait_tag('pub')
        self.arrive(sD2)
        self.stamp(f'o.arrive{l}')
        for g in self.pre[npre:]: a.extend(g)
        self.npost1 = len(self.pre[npre:])
        a.extend(self.unpack(8, lambda k: 16 + k))

    def red_addr(self, owner_fn):
        a = self.a
        for q in range(1, 4):
            owner_fn(q)
            a(f's_lshl_b32 s{sT0}, s{sT0}, 14\ns_add_u32 s{sT0}, s{sT0}, {LB + (q-1)*4096}\nv_add_u32 v{RA+q-1}, s{sT0}, v{vL16}')
    def red_write(self, q, u, src): return f'ds_write_b128 v{RA+q-1}, {src} offset:{1024*u}'
    def red_finish(self, own):
        a = self.a
        a(f'v_accvgpr_read_b32 v5, a{aOWN}')
        a.drain(lgkm=True)
        a('s_barrier')
        for q in range(3):
            for u in range(4): a(f'ds_read_b128 {v(80 + 16*q + 4*u)}, v5 offset:{4096*q + 1024*u}')
        for q in range(3):
            for k in range(0, 16, 2): a(f'v_pk_add_f32 v[{own+k}:{own+k+1}], v[{own+k}:{own+k+1}], v[{80+16*q+k}:{81+16*q+k}]')
    def tile_out(self, sx, sst, vaddr, srd_, off2, sc):
        a = self.a
        for u in range(2):
            for q in range(4): a(f'v_cvt_pk_bf16_f32 v{32+4*u+q}, v{16+8*u+2*q}, v{17+8*u+2*q}')
            a(f'buffer_store_dwordx4 {v(32+4*u)}, v{vaddr}, s[{srd_}:{srd_+3}], s{sx} offen offset:{off2*u}{sc}', 'pub')
        if sst is not None:
            a('v_pk_add_f32 v[40:41], v[16:17], v[18:19]\nv_pk_mul_f32 v[42:43], v[16:17], v[16:17]\nv_pk_fma_f32 v[42:43], v[18:19], v[18:19], v[42:43]')
            for k in range(4, 16, 2): a(f'v_pk_add_f32 v[40:41], v[40:41], v[{16+k}:{17+k}]\nv_pk_fma_f32 v[42:43], v[{16+k}:{17+k}], v[{16+k}:{17+k}], v[42:43]')
            a('v_add_f32 v40, v40, v41\nv_add_f32 v41, v42, v43\nv_permlane32_swap_b32 v40, v41\nv_add_f32 v40, v40, v41')
            a(f'buffer_store_dword v40, v6, s[8:11], s{sst} offen sc1', 'pub')
    def tile_addr(self, tb, blk, xi):
        self.a(f's_lshl_b32 s{sT0}, s{tb}, 15\ns_lshl_b32 s{sT1}, s{blk}, 11\ns_add_u32 s{sT0}, s{sT0}, s{sT1}\ns_add_u32 s{sT0}, s{sT0}, {X + xi*0x200000}')
        self.a(f'v_accvgpr_read_b32 v6, a{aST4}\ns_lshl_b32 s{sT2}, s{tb}, 12\ns_lshl_b32 s{sT1}, s{blk}, 8\ns_add_u32 s{sT2}, s{sT2}, s{sT1}\ns_add_u32 s{sT2}, s{sT2}, {ST + xi*0x40000}')
    def p2(self, l):
        a = self.a; xi = 2 * l
        self.red_addr(lambda q: a(f's_xor_b32 s{sT0}, s{sW}, {q}'))
        a(f's_lshl_b32 s{sT0}, s{sTB2}, 2\ns_add_u32 s{sT0}, s{sT0}, s{sW}\ns_lshl_b32 s{sT0}, s{sT0}, 7\ns_add_u32 s{sD2}, s{sT0}, {OC + l*0x8000}')
        a(f's_lshl_b32 s{sT3}, s{sTB2}, 15\ns_lshl_b32 s{sT1}, s{sW}, 13\ns_add_u32 s{sT3}, s{sT3}, s{sT1}\ns_add_u32 s{sT3}, s{sT3}, {OF + l*0x200000}')
        self.poll([sD2], 4)
        self.stamp(f'p2.flag{l}')
        for s in range(8): a.extend(self.ld(v(80 + 4 * s), sT3, 1024 * s, sT1))
        w4 = [self.ld(ag(4 * e), sW4, 1024 * e, sT1) for e in range(56)] if l == 0 else []
        nw4 = self.cfg.get('nw4p2', 20)
        pf = w4[56 - nw4:]; self.left = w4[:56 - nw4]
        self.tile_addr(sTB2, sBLK2, xi + 1)
        seq = [(s, q) for s in range(4) for q in range(4)] + [(s, q) for q in (1, 2, 3, 0) for s in range(4, 8)]
        ins = {}
        def put(n, x): ins.setdefault(n, []).extend(x if isinstance(x, list) else [x])
        for k in range(8): put(23 + k, self.red_write(1 + k // 4, k % 4, v(32 + 4 * k)))
        for k, g in enumerate(pf[:12]): put(2 * k + 3, g)
        for n, (s, q) in enumerate(seq):
            ac = v(16 + 16 * q, 16)
            a(f'{M32} {ac}, {v(XR + 16*s + 4*q)}, {v(80 + 4*s)}, {ac if (s or q == 0) else "0"}')
            a.extend(ins.get(n, []))
        a.extend(weave([[self.red_write(3, u, v(64 + 4 * u))] for u in range(4)], pf[12:16]))
        self.stamp(f'p2.mfma{l}')
        a.wait_tag('w3a')
        self.red_finish(16)
        self.tile_out(sT0, sT2, vL16, 8, 1024, ' sc1')
        a(f's_lshl_b32 s{sD3}, s{sW}, 13\ns_add_u32 s{sD3}, s{sD3}, s{sW3}')
        post = sum([self.dma4(sL16K, LB + 4096 * b, sD3, LB + 32768 * (b >> 1) + 4096 * (b & 1), f'w3b{b >> 1}') for b in range(4)], [])
        n3 = self.cfg.get('npre3', 0)
        for g in post[:n3]: a.extend(g)
        a(f's_lshl_b32 s{sT0}, s{sTB2}, 7\ns_add_u32 s{sT0}, s{sT0}, {X1C + l*0x2000}')
        a.wait_tag('pub')
        self.arrive(sT0)
        self.stamp(f'p2.arrive{l}')
        for g in pf[16:]: a.extend(g)
        npost = self.cfg.get('npost2', 8)
        for g in post[n3:npost]: a.extend(g)
        self.left34 = post[npost:]

    def hreg(self, e): return XR + 4 * e if e < 32 else (80 + 4 * (e - 32) if e < 44 else XR + 4 * (e - 44))
    def hslot(self, k):
        if k < 48: return k >> 1, k & 1
        return (24 + k - 48, 1) if k < 52 else (24 + k - 52, 0)
    def hl(self, k):
        idx, b = self.hslot(k); i, jj = idx >> 2, idx & 3
        return self.ld(v(self.hreg(k)), (sHL0, sHL1)[b], 1024 * (7 * jj + i), sT1)
    def p3(self, l):
        a = self.a; xi = 2 * l + 1; NX0 = 14; WB = 64; PD = 7
        a(f's_lshl_b32 s{sT0}, s{sTB}, 7\ns_add_u32 s{sD2}, s{sT0}, {X1C + l*0x2000}')
        a(f's_add_u32 s{sT3}, s{sXB}, {X + xi*0x200000}')
        a(f's_mul_i32 s{sT0}, s{sTB}, 112\ns_mul_i32 s{sT2}, s{sJ}, 7\ns_add_u32 s{sT0}, s{sT0}, s{sT2}\ns_lshl_b32 s{sT0}, s{sT0}, 10\ns_add_u32 s34, s{sT0}, {H + l*0x700000}\ns_add_u32 s35, s34, 4096')
        a(f's_lshl_b32 s{sT0}, s{sTB}, 2\ns_lshr_b32 s{sT1}, s{sJ}, 2\ns_add_u32 s{sT0}, s{sT0}, s{sT1}\ns_lshl_b32 s{sT0}, s{sT0}, 7\ns_add_u32 s{sHA}, s{sT0}, {HC + l*0x8000}')
        a(f's_and_b32 s{sT0}, s{sTB4}, -2\ns_lshl_b32 s{sT0}, s{sT0}, 2\ns_add_u32 s{sT0}, s{sT0}, s{sW}\ns_lshl_b32 s{sT0}, s{sT0}, 7\ns_add_u32 s{sHC}, s{sT0}, {HC + l*0x8000}')
        a(f's_add_u32 s{sHC2}, s{sHC}, 512')
        for (sb, tb) in ((sHL0, sTBA), (sHL1, sTBB)):
            a(f's_mul_i32 s{sb}, s{tb}, 112\ns_mul_i32 s{sT1}, s{sW}, 28\ns_add_u32 s{sb}, s{sb}, s{sT1}\ns_lshl_b32 s{sb}, s{sb}, 10\ns_add_u32 s{sb}, s{sb}, {H + l*0x700000}')
        a(f's_lshl_b32 s36, s{sTB4}, 15\ns_lshl_b32 s{sT1}, s{sBLK4}, 11\ns_add_u32 s36, s36, s{sT1}\ns_add_u32 s36, s36, {X + xi*0x200000}')
        a(f's_add_u32 s{sT2}, s{sW3}, s{sL4K}')
        acc = [16, 32, 48, 104, 16, 32, 104]
        order = [(i, s) for s in range(32) for i in range(3)] + [(i, s) for i in range(3, 7) for s in range(32)]
        def where(i, s):
            if i < 3: return 32768 * i + 1024 * s
            if i < 5: return LB + 16384 * (s >> 3) + 8192 * (i - 3) + 1024 * (s & 7)
            if i == 5: return 32768 * (s >> 4) + 1024 * (s & 15)
            return 65536 + 1024 * s if s < 16 else 1024 * s
        rd = lambda n: f'ds_read_b128 {v(WB + 4*(n%8))}, {self.lds(where(*order[n]))}'
        for n in range(PD): a(rd(n))
        self.poll([sD2], 16)
        self.stamp(f'p3.flag{l}')
        for s in range(NX0): a.extend(self.xload(xi, s))
        def epi(i):
            b = acc[i]; d = 96 + 4 * (i % 2); o = []
            for q in range(4):
                for k in (2 * q, 2 * q + 1):
                    o += [f'v_mul_f32 v{b+k}, v{b+k}, v5', f'v_mul_f32 v{b+k}, v{b+k}, v{b+8+k}']
                o.append(f'v_cvt_pk_bf16_f32 v{d+q}, v{b+2*q}, v{b+2*q+1}')
            if 'hs' not in self.cfg.get('drop', ''): o.append((f'buffer_store_dwordx4 {v(d)}, v{vL16}, s[8:11], s{34 if i < 4 else 35} offen offset:{1024*(i%4)} sc1', f'h{i}'))
            if 'ep' in self.cfg.get('drop', ''): o = o[-1:]
            return o
        c = self.cfg
        ins = {}
        def put(n, x): ins.setdefault(n, []).extend(x if isinstance(x, list) else [x])
        for s in range(NX0, 32): put(3 * (s - NX0), self.xload(xi, s))
        put(4, self.stat_loads(xi))
        rs = [f'v_accvgpr_read_b32 v9, a{aBP}'] + self.rstd() + ['ds_bpermute_b32 v5, v9, v96']
        for k, x in enumerate(rs): put(36 + k, x)
        put(36 + len(rs) + 8, 'v_mul_f32 v5, v5, v5')
        S5 = 5 * 32768
        dA = self.dma4(sL4K, 0, sT2, S5, 'w3c') + self.dma4(sL4K, 32768, sT2, S5 + 16384, 'w3c') + self.dma4(sL4K, 65536, sT2, S5 + 32768, 'w3c')
        dB = self.dma4(sL4K, 16384, sT2, S5 + 49152, 'w3d')
        res = [[f'buffer_load_dwordx4 {v(8)}, v{vL16}, s[8:11], s36 offen sc1'], [f'buffer_load_dwordx4 {v(12)}, v{vL16}, s[8:11], s36 offen offset:1024 sc1']]
        put(48, [('wait_tag', 'w3b0'), 's_barrier'])
        step = c.get('step3', 25) / 10.0
        pos = 54.0
        for g in self.left34 + dA + res: put(int(pos), g); pos += 2.0
        assert not self.left34 or 54 + 2 * len(self.left34) < 80
        put(101, [('wait_tag', 'w3b1'), 's_barrier'])
        for k, g in enumerate(dB): put(102 + k, g)
        pos = max(pos, 108.0)
        for g in self.left: put(int(pos), g); pos += step
        self.w4_end = pos
        put(151, [('wait_tag', 'w3d'), 's_barrier'])
        ep = epi(0) + epi(1) + epi(2)
        for k, x in enumerate(ep): put(98 + k // 3 + (4 if k >= 12 else 0), x)
        for i in range(3, 6):
            for k, x in enumerate(epi(i)): put(96 + 32 * (i - 2) + 2 + k // c.get('epr', 2), x)
        put(224, epi(6))
        for k, x in enumerate(self.unpack(8, lambda k: 16 + k)): put(192 + k, x)
        last = [2, 4, 5, 6]; first_k = [0, 24, 40, 48, 56]
        arr = [c.get('arrA', 170), c.get('arrB', 218), c.get('arrC', 246), c.get('arrD', 266)]
        chk = [c.get('chkA', 186), c.get('chkB', 232), c.get('chkC', 260), c.get('chkD', 280)]
        use = [c.get('useA', 202), c.get('useB', 248), c.get('useC', 276), c.get('useD', 296)]
        pace = [2, 2, 2, 1]
        seq = [self.hslot(k) for k in range(56)]
        for g in range(4):
            put(arr[g], [('wait_tag', f'h{last[g]}')] + self.arrive_l(sHA, 1 << (8 * g), (sAV, 63)[g & 1]))
            put(chk[g], self.peek([sHC, sHC2]))
            put(use[g], self.settle([sHC, sHC2], 4, g))
            for k in range(first_k[g], first_k[g + 1]):
                n = use[g] + pace[g] * (k - first_k[g])
                n = min(n, 224 + 2 * k - 1)
                assert n >= use[g] and (k >= 32 or n >= 192 + k)
                put(n, self.hl(k))
        put(223, ['s_barrier'])
        self.extra = []
        if l == 0:
            for b in range(6): self.extra += self.dma4(sL4K, 16384 * b, sW1, W1 + 16384 * b, 'w1')
            nin = c.get('w1in', 10)
            for k, g in enumerate(self.extra[:nin]): put(min(use[3] + 9 + 2 * k, 335), g)
            self.extra = self.extra[nin:]
        self.a = tmp = Asm(); self.red_addr(lambda q: tmp(f's_xor_b32 s{sT0}, s{sW}, {q}')); self.a = a
        for k, x in enumerate(tmp.items): put(224 + 92 + k // 2, [x])
        for k in range(8): put(min(224 + 106 + k, 335), self.red_write(2 + k // 4, k % 4, v(48 + 4 * k)))
        reg = {self.hslot(k): self.hreg(k) for k in range(56)}
        for n, (i, s) in enumerate(order):
            cc = v(acc[i], 16) if s else '0'
            a(f'{M32} {v(acc[i],16)}, {v(WB + 4*(n%8))}, {v(XR+4*s)}, {cc}')
            if n + PD < len(order): a(rd(n + PD))
            a.extend(ins.get(n, []))
            if n in (0, 50, 95, 127, 159, 191, 203): self.stamp(f'_p3.n{n}.{l}')
        self.stamp(f'p3.mfma{l}')
        n = 224
        for (idx, b) in seq:
            for t in range(2):
                q = t + 2 * b; ac = v(16 + 16 * q, 16)
                a(f'{M32} {ac}, {ag(8*idx + 4*t)}, {v(reg[(idx, b)])}, {ac if (idx or q == 0) else "0"}')
                a.extend(ins.get(n, []))
                if (n - 224) % 16 == 15: self.stamp(f'_p4.n{n}.{l}')
                n += 1

    def p4(self, l):
        a = self.a; extra = self.extra
        self.stamp(f'p4.mfma{l}')
        if l == 0: self.tile_addr(sTB4, sBLK4, 2)
        else: a(f'v_accvgpr_read_b32 v7, a{aOUT}\ns_lshl_b32 s{sT0}, s{sTB4}, 15\ns_lshl_b32 s{sT1}, s{sBLK4}, 6\ns_add_u32 s{sT0}, s{sT0}, s{sT1}')
        for u in range(4): a(self.red_write(1, u, v(32 + 4 * u)))
        self.red_finish(16)
        if l == 0:
            self.tile_out(sT0, sT2, vL16, 8, 1024, ' sc1')
            n4 = self.cfg.get('npre4', 0)
            for g in extra[:n4]: a.extend(g)
            a(f's_lshl_b32 s{sT0}, s{sTB4}, 7\ns_add_u32 s{sT0}, s{sT0}, {X2C}')
            a.wait_tag('pub')
            self.arrive(sT0)
            for g in extra[n4:]: a.extend(g)
        else:
            self.tile_out(sT0, None, 7, 12, 32, '')
        self.stamp(f'p4.end{l}')

    def finish(self):
        a = self.a
        if self.cfg.get('diag'):
            a('s_memrealtime s[58:59]\ns_waitcnt vmcnt(0) lgkmcnt(0)\nv_writelane_b32 v0, s78, 0\nv_writelane_b32 v0, s58, 1')
            for k, s in self.early: a(f'v_writelane_b32 v0, s{s}, {k + 2}')
            a(f's_lshl_b32 s{sT0}, s2, 2\ns_add_u32 s{sT0}, s{sT0}, s{sW}\ns_lshl_b32 s{sT0}, s{sT0}, 8\ns_add_u32 s{sT0}, s{sT0}, {DBG}')
            a(f'buffer_store_dword v0, v{vL4}, s[8:11], s{sT0} offen')
        a(f's_or_b32 s{sT0}, s2, s{sW}\ns_cmp_lg_u32 s{sT0}, 0\ns_cbranch_scc1 L_exit\ns_mov_b32 s{sT0}, {NW}\nv_mov_b32 v8, 0\nv_mov_b32 v9, s{sNO}\ns_mov_b64 exec, 1')
        a(f'buffer_store_dword v9, v8, s[8:11], s{sT0} offen sc1\nL_exit:\ns_endpgm\nL_code_end:')
        return a.finish()

def gen_main(name, cfg):
    g = Gen(name, cfg)
    g.init()
    stop = cfg.get('stop', 99); n = 0
    for l in range(2):
        for ph in (g.p1, g.p2, g.p3, g.p4):
            g.l = l
            if n < stop: ph(l)
            n += 1
    txt = g.finish()
    return txt, g
```

```python
from layout import *
from prep import srd, bit, onehot

SJOB, SNONCE0 = 38, 60
NCD, NCS, NCM = 64, 72, 76
NCL1, NCL2, NCO, NCT = 80, 84, 88, 89
NCA, NCB = 0, 32
WS_SIZE = [WS_END]

def emit_prep(a, stamp=None, l2pf=True):
    st = 'sc1'
    a('v_and_b32 v1, 63, v0\nv_lshlrev_b32 v9, 4, v1')
    srd(a, 12, 16, 2048 * 512 * 2)
    a('s_lshl_b32 s4, s2, 2\ns_add_u32 s4, s4, s3\ns_lshl_b32 s4, s4, 11')
    a('buffer_load_dwordx4 v[160:163], v9, s[12:15], s4 offen\nbuffer_load_dwordx4 v[164:167], v9, s[12:15], s4 offen offset:1024')
    a('v_and_b32 v2, 31, v0\nv_bfe_u32 v3, v0, 5, 1')
    bit(a, 4, 0, 2); bit(a, 5, 0, 3); bit(a, 6, 0, 4)
    a('v_and_b32 v7, 3, v0')
    a('s_and_b32 s44, s2, 7\ns_lshr_b32 s45, s2, 3\ns_and_b32 s46, s45, 3\ns_lshl_b32 s47, s46, 2\ns_add_u32 s47, s47, s3')
    a('s_bfe_u32 s34, s45, 0x10002\ns_lshl_b32 s5, s44, 1\ns_add_u32 s34, s34, s5\ns_lshr_b32 s35, s45, 3')
    def rowmap(kind, d=11):
        hi_, mid = (6, 4) if kind == 'std' else (4, 6)
        a(f'v_lshlrev_b32 v{d}, 4, v{hi_}\nv_lshl_add_u32 v{d}, v{mid}, 3, v{d}\nv_lshl_add_u32 v{d}, v5, 2, v{d}\nv_add_u32 v{d}, v{d}, v7')
    def sel(vcond_hi_eq, vhalf, vi4, d):
        a(f'v_lshl_add_u32 v12, v{vi4}, 2, v7')
        a(f'v_cmp_eq_u32 vcc, v3, v{vcond_hi_eq}\nv_cndmask_b32 v13, 0, 1, vcc')
        a(f'v_and_b32 v14, v13, v{vhalf}\nv_sub_u32 v13, v13, v14')
        onehot(a, d, 12, 13, 24); onehot(a, d + 4, 12, 14, 24)
    a('s_cmp_eq_u32 s35, 3\ns_cbranch_scc1 L_unit_wo')
    srd(a, 40, 18, 512 * 1536 * 2)
    rowmap('std')
    a('v_mul_u32_u24 v11, 3072, v11\nv_lshl_add_u32 v11, v3, 4, v11')
    a('s_add_u32 s5, s35, 1\ns_cmp_eq_u32 s35, 2\ns_cselect_b32 s5, 0, s5\ns_lshl_b32 s5, s5, 10\ns_lshl_b32 s36, s34, 6\ns_add_u32 s36, s36, s5')
    a(f's_mul_i32 s5, s47, {32*3072}\ns_add_u32 s4, s36, s5')
    a('buffer_load_dwordx4 v[64:67], v11, s[40:43], s4 offen\nbuffer_load_dwordx4 v[68:71], v11, s[40:43], s4 offen offset:32')
    srd(a, 48, 20, 32 * 16 * 16 * 2)
    a('v_lshl_add_u32 v12, v5, 2, v7\nv_lshl_add_u32 v12, v6, 3, v12\nv_lshlrev_b32 v12, 1, v12')
    a('v_lshl_add_u32 v12, v3, 8, v12\nv_lshl_add_u32 v12, v4, 9, v12\ns_lshl_b32 s5, s34, 10')
    for i in range(8): a(f'buffer_load_ushort v{40+i}, v12, s[48:51], s5 offen offset:{32*i}')
    a(f's_mul_i32 s37, s34, {96*1024}\ns_lshl_b32 s5, s35, 10\ns_add_u32 s37, s37, s5\ns_mul_i32 s5, s47, 6144\ns_add_u32 s52, s37, s5\ns_add_u32 s52, s52, {W1U}\ns_add_u32 s53, s52, 3072')
    sel(5, 6, 4, 16)
    a('s_branch L_unit_go')
    a('L_unit_wo:')
    srd(a, 40, 22, 512 * 512 * 2)
    rowmap('o')
    a('v_lshlrev_b32 v11, 10, v11\nv_lshl_add_u32 v11, v3, 4, v11\ns_lshl_b32 s4, s47, 15\ns_lshl_b32 s5, s34, 6\ns_add_u32 s4, s4, s5')
    a('buffer_load_dwordx4 v[64:67], v11, s[40:43], s4 offen\nbuffer_load_dwordx4 v[68:71], v11, s[40:43], s4 offen offset:32')
    a('s_lshr_b32 s52, s34, 2\ns_lshl_b32 s52, s52, 2\ns_add_u32 s52, s52, s46\ns_lshl_b32 s52, s52, 15\ns_xor_b32 s5, s34, s46\ns_and_b32 s5, s5, 3\ns_lshl_b32 s5, s5, 10\ns_add_u32 s52, s52, s5')
    a(f's_lshl_b32 s5, s3, 13\ns_add_u32 s52, s52, s5\ns_add_u32 s52, s52, {W2}\ns_add_u32 s53, s52, 4096')
    sel(4, 6, 5, 16)
    a('L_unit_go:'); a.forget()
    def l2_prefetch():
        a('s_lshl_b32 s4, s45, 2\ns_add_u32 s4, s4, s3\ns_cmp_lt_u32 s4, 32\ns_cselect_b32 s48, s26, s28\ns_cselect_b32 s49, s27, s29')
        a('s_cmp_lt_u32 s4, 64\ns_cselect_b32 s48, s48, s30\ns_cselect_b32 s49, s49, s31\ns_cselect_b32 s5, 1, 0\ns_and_b32 s49, s49, 0xffff')
        a(f's_cmp_lt_u32 s4, 92\ns_cselect_b32 s50, {512*1792*2}, 0\ns_mov_b32 s51, 0x20000')
        a('v_lshrrev_b32 v12, 2, v1\nv_mul_u32_u24 v12, 3584, v12\nv_lshl_add_u32 v12, v7, 7, v12\nv_lshlrev_b32 v13, 10, v1')
        a(f's_and_b32 s6, s4, 31\ns_mul_i32 s6, s6, {16*3584}\ns_mul_i32 s7, s44, 448\ns_and_b32 s7, s7, -128\ns_add_u32 s6, s6, s7')
        a('s_sub_u32 s4, s4, 64\ns_lshl_b32 s4, s4, 16\ns_lshl_b32 s7, s44, 7\ns_add_u32 s4, s4, s7\ns_cmp_eq_u32 s5, 1\ns_cselect_b32 s4, s6, s4\ns_cselect_b64 vcc, -1, 0')
        a('v_cndmask_b32 v12, v13, v12, vcc\nbuffer_load_dword v251, v12, s[48:51], s4 offen')
    if l2pf == 1: l2_prefetch()
    srd(a, 8, 32, WS_SIZE[0])

    def nc_srds(p1, p2, size, store):
        srd(a, NCL1, p1, size); srd(a, NCL2, p2, size)
        a(f's_mov_b32 s{NCS}, s8\ns_mov_b32 s{NCS+1}, s9\ns_mov_b32 s{NCS+2}, {WS_SIZE[0] if store else 0}\ns_mov_b32 s{NCS+3}, 0x20000')
    rowmap('std', 15)
    a('s_lshr_b32 s5, s45, 2\ns_mul_i32 s5, s5, 3\ns_add_u32 s5, s5, s46\ns_sub_u32 s5, s5, 1\ns_sub_u32 s6, s45, 6\ns_cmp_lt_u32 s45, 24\ns_cselect_b32 s39, s5, s6')
    a('s_cselect_b32 s5, s46, 1\ns_cmp_eq_u32 s5, 0\ns_cbranch_scc1 L_nc_w1\ns_cmp_lt_u32 s39, 14\ns_cbranch_scc1 L_nc_gu\ns_cmp_lt_u32 s39, 21\ns_cbranch_scc1 L_nc_wd')
    nc_srds(22, 22, 0, False)
    a(f's_mov_b32 s{NCO}, 0\ns_mov_b32 s6, 0\ns_mov_b32 s7, 0\ns_mov_b32 s{NCM}, 0\ns_mov_b32 s39, 296')
    for k in range(8): a(f's_mov_b32 s{NCD+k}, 0')
    a('s_branch L_nc_go')
    a('L_nc_w1:')
    nc_srds(18, 18, 512 * 1536 * 2, True)
    a(f's_mul_i32 s5, s3, {128*3072}\ns_add_u32 s{NCO}, s36, s5\ns_mov_b32 s{NCM}, 0xbb000000\ns_mul_i32 s5, s3, {8*3072}\ns_add_u32 s5, s5, s37')
    for k in range(8): a(f's_add_u32 s{NCD+k}, s5, {W1 + 3072*k}')
    a('s_lshl_b32 s39, s35, 4\ns_add_u32 s39, s39, s34\ns_mov_b32 s6, 3072\ns_mov_b32 s7, 32\ns_branch L_nc_go')
    a('L_nc_gu:')
    nc_srds(26, 28, 512 * 1792 * 2, True)
    a(f's_mul_i32 s6, s44, 14\ns_add_u32 s39, s39, s6\ns_lshl_b32 s{NCO}, s39, 5\ns_mul_i32 s5, s3, {128*3584}\ns_add_u32 s{NCO}, s{NCO}, s5\ns_mov_b32 s{NCM}, 0xbb000000')
    a('s_lshl_b32 s6, s39, 15\ns_lshl_b32 s5, s3, 13\ns_add_u32 s6, s6, s5')
    for k in range(8): a(f's_add_u32 s{NCD+k}, s6, {W3 + 1024*k}')
    a('s_add_u32 s39, s39, 48\ns_mov_b32 s6, 3584\ns_mov_b32 s7, 0\ns_branch L_nc_go')
    a('L_nc_wd:')
    nc_srds(30, 30, 1792 * 512 * 2, True)
    a('s_mul_i32 s6, s44, 7\ns_add_u32 s39, s39, s6\ns_sub_u32 s39, s39, 14\ns_lshl_b32 s54, s39, 2\ns_add_u32 s54, s54, s3\ns_add_u32 s39, s39, 160')
    a('s_mul_i32 s55, s54, 4682\ns_lshr_b32 s55, s55, 16\ns_mul_i32 s5, s55, 14\ns_sub_u32 s54, s54, s5')
    a(f's_lshl_b32 s{NCO}, s54, 17\ns_lshl_b32 s5, s55, 6\ns_add_u32 s{NCO}, s{NCO}, s5\ns_mov_b32 s{NCM}, 0')
    for k in range(8):
        a(f's_lshl_b32 s5, s54, 3\ns_add_u32 s5, s5, {k}\ns_mul_i32 s6, s5, 147\ns_lshr_b32 s6, s6, 10')
        a('s_mul_i32 s7, s6, 7\ns_sub_u32 s7, s5, s7\ns_lshr_b32 s5, s6, 2\ns_and_b32 s6, s6, 3')
        a('s_lshl_b32 s7, s7, 2\ns_add_u32 s7, s7, s6\ns_lshl_b32 s7, s7, 1\ns_xor_b32 s6, s55, s5\ns_and_b32 s6, s6, 1\ns_add_u32 s7, s7, s6')
        a('s_lshr_b32 s6, s55, 1\ns_lshl_b32 s6, s6, 2\ns_add_u32 s6, s6, s5\ns_mul_i32 s6, s6, 56\ns_add_u32 s6, s6, s7')
        a(f's_lshl_b32 s6, s6, 10\ns_add_u32 s{NCD+k}, s6, {W4}')
    a('s_mov_b32 s6, 1024\ns_mov_b32 s7, 32')
    a('L_nc_go:')
    a(f'v_mul_lo_u32 v15, s6, v15\nv_lshl_add_u32 v15, v3, 4, v15\nv_add_u32 v10, s7, v15')
    a(f's_lshl_b32 s{NCT}, s6, 5\ns_lshl_b32 s{SJOB}, s39, 7\ns_add_u32 s{SJOB}, s{SJOB}, {FL}')
    sel(4, 6, 5, 32)

    a(f's_waitcnt vmcnt({1 if l2pf == 1 else 0})')
    if stamp: a(stamp)
    a('s_and_b32 s5, s35, 1\ns_cmp_eq_u32 s5, 1\ns_cbranch_scc1 L_unit_sel\nv_cmp_ne_u32 vcc, 0, v4')
    for q in range(4): a(f'v_lshl_or_b32 v{24+q}, v{41+2*q}, 16, v{40+2*q}')
    for q in range(4): a(f'v_cndmask_b32 v{16+q}, v{24+q}, 0, vcc\nv_cndmask_b32 v{20+q}, 0, v{24+q}, vcc')
    a('L_unit_sel:\ns_nop 1')
    a('v_mfma_f32_32x32x16_bf16 v[96:111], v[64:67], v[16:19], 0\nv_mfma_f32_32x32x16_bf16 v[96:111], v[68:71], v[20:23], v[96:111]')
    for r in range(2):
        for q in range(4):
            s = 160 + 4 * r + q; d = 72 + 8 * r + 2 * q
            a(f'v_lshlrev_b32 v{d}, 16, v{s}\nv_and_b32 v{d+1}, 0xffff0000, v{s}')
        b = 72 + 8 * r
        a(f'v_pk_add_f32 v[28:29], v[{b}:{b+1}], v[{b+2}:{b+3}]\nv_pk_mul_f32 v[30:31], v[{b}:{b+1}], v[{b}:{b+1}]\nv_pk_fma_f32 v[30:31], v[{b+2}:{b+3}], v[{b+2}:{b+3}], v[30:31]')
        for k in (4, 6): a(f'v_pk_add_f32 v[28:29], v[28:29], v[{b+k}:{b+k+1}]\nv_pk_fma_f32 v[30:31], v[{b+k}:{b+k+1}], v[{b+k}:{b+k+1}], v[30:31]')
        a(f'v_add_f32 v{24+r}, v28, v29\nv_add_f32 v{26+r}, v30, v31')
    for u in range(2):
        for q in range(4): a(f'v_cvt_pk_bf16_f32 v{48+4*u+q}, v{96+8*u+2*q}, v{97+8*u+2*q}')
        a(f'buffer_store_dwordx4 v[{48+4*u}:{51+4*u}], v9, s[8:11], s{52+u} offen {st}')
    a('v_permlane32_swap_b32 v24, v25\nv_permlane32_swap_b32 v26, v27\nv_add_f32 v24, v24, v25\nv_add_f32 v26, v26, v27')
    a('v_permlane16_swap_b32 v24, v26\nv_add_f32 v24, v24, v26')
    for sh in (8, 4, 2, 1): a(f'v_add_f32_dpp v24, v24, v24 row_ror:{sh} row_mask:0xf bank_mask:0xf')
    a('v_mov_b32 v25, v24\nv_permlane16_swap_b32 v24, v25')
    a('v_mul_f32 v24, 0x3b000000, v24\nv_mul_f32 v25, 0x3b000000, v25\nv_fma_f32 v25, -v24, v24, v25\nv_max_f32 v25, 0, v25\nv_add_f32 v25, 0x3727c5ac, v25\nv_rsq_f32 v25, v25')
    a('v_mul_f32 v24, -v24, v25')
    a('v_readlane_b32 s4, v25, 0\nv_readlane_b32 s5, v24, 0\nv_readlane_b32 s6, v25, 32\nv_readlane_b32 s7, v24, 32')
    a('s_lshl_b32 s54, s3, 1\nv_and_b32 v12, 7, v1\nv_xor_b32 v13, s54, v12\nv_lshlrev_b32 v13, 4, v13\nv_lshl_add_u32 v13, v1, 7, v13\nv_xor_b32 v14, 16, v13')
    for r in range(2):
        a(f'v_mov_b32 v28, s{5+2*r}')
        for k in range(8): a(f'v_fma_f32 v{72+8*r+k}, v{72+8*r+k}, s{4+2*r}, v28')
        for q in range(4): a(f'v_cvt_pk_bf16_f32 v{56+4*r+q}, v{72+8*r+2*q}, v{73+8*r+2*q}')
        a(f'ds_write_b128 v{13+r}, v[{56+4*r}:{59+4*r}]')
    a('s_cmp_lt_u32 s39, 48\ns_cbranch_scc0 L_nc_sel')
    for k in range(8): a(f'v_mov_b32 v{32+k}, v{16+k}')
    a('L_nc_sel:')
    for k in range(8): a(f'v_accvgpr_write_b32 a{NCB+k}, v{32+k}')
    a(f's_lshr_b32 s46, s2, 2\ns_and_b32 s7, s2, 3\ns_lshl_b32 s5, s7, 15\ns_lshl_b32 s6, s46, 9\ns_add_u32 s5, s5, s6\ns_add_u32 s5, s5, {HC}')
    a(f's_min_u32 s4, s7, 2\ns_lshl_b32 s4, s4, 13\ns_lshl_b32 s6, s46, 7\ns_add_u32 s4, s4, s6\ns_add_u32 s4, s4, {X1C}')
    a(f's_lshr_b32 s6, s35, 1\ns_lshl_b32 s6, s6, 13\ns_lshl_b32 s54, s34, 7\ns_add_u32 s6, s6, s54\ns_add_u32 s6, s6, {KVD - 5*2048}')
    a('v_lshlrev_b32 v28, 7, v1\nv_add_u32 v28, s5, v28\nv_mov_b32 v29, s4\nv_cmp_eq_u32 vcc, 4, v1\nv_cndmask_b32 v28, v28, v29, vcc')
    a('v_lshlrev_b32 v29, 11, v1\nv_add_u32 v29, s6, v29\nv_cmp_lt_u32 vcc, 4, v1\nv_cndmask_b32 v28, v28, v29, vcc')
    a('s_and_b32 s6, s45, 3\ns_cmp_eq_u32 s6, 0\ns_cselect_b32 s6, 1, 0\ns_and_b32 s4, s35, 1\ns_andn2_b32 s6, s6, s4')
    a('s_cmp_eq_u32 s6, 1\ns_cselect_b32 s4, 0x1ff, 31\ns_mov_b32 s5, 0\nv_mov_b32 v29, 0\ns_mov_b64 exec, s[4:5]')
    a(f'buffer_store_dword v29, v28, s[8:11], 0 offen {st}\ns_mov_b64 exec, -1')
    a('v_lshrrev_b32 v28, 3, v1\nv_xor_b32 v29, v28, v12\nv_lshlrev_b32 v29, 4, v29\nv_lshl_add_u32 v29, v28, 7, v29\ns_lshl_b32 s5, s3, 11\nv_add_u32 v29, s5, v29')
    a('v_lshlrev_b32 v28, 9, v28\nv_lshl_add_u32 v28, v12, 4, v28')
    a(f's_lshl_b32 s4, s46, 15\ns_lshl_b32 s5, s3, 13\ns_add_u32 s4, s4, s5\ns_lshl_b32 s5, s7, 7\ns_add_u32 s4, s4, s5\ns_add_u32 s4, s4, {X}\ns_add_u32 s5, s4, 4096')
    a.drain(lgkm=True)
    a('s_barrier\nds_read_b128 v[64:67], v29\nds_read_b128 v[68:71], v29 offset:1024')
    a(f'buffer_store_dwordx4 v[64:67], v28, s[8:11], s4 offen {st}\nbuffer_store_dwordx4 v[68:71], v28, s[8:11], s5 offen {st}')
    a('v_mov_b32 v160, v15\nv_mov_b32 v161, v10')

def gather(a):
    for mb in range(4):
        a(f'buffer_load_dwordx4 a[{NCA+8*mb}:{NCA+8*mb+3}], v160, s[{NCL1}:{NCL1+3}], s{NCO} offen\nbuffer_load_dwordx4 a[{NCA+8*mb+4}:{NCA+8*mb+7}], v161, s[{NCL2}:{NCL2+3}], s{NCO} offen')
        if mb < 3: a(f's_add_u32 s{NCO}, s{NCO}, s{NCT}')
```

```python
import re
from asmlib import Asm, weave
from layout import *
from prep import srd, onehot
import prep2

LB = 0x18000
TIMEOUT = 1 << 16
M32 = 'v_mfma_f32_32x32x16_bf16'
M16 = 'v_mfma_f32_16x16x32_bf16'
vL16, vLA, vLC, vL4 = 1, 2, 3, 4
XR = 128
SEL0, SEL1 = 248, 252
aKVW, aZW, aRSW, aRSV, aBP, aST4, aOUT, aOWN, aC4, aTW, aKVA, aZA, aZB, aNCF = range(232, 246)
TOT = LB + 0x3000
ZERO = LB + 0x7000
ZPRIV = 0x3C00
sW, sR, sJ, sTB = 3, 16, 17, 18
sXB, sSTB, sW1, sW3, sW2, sW4, sL4K, sL16K = 20, 21, 22, 23, 24, 25, 26, 27
sTB2, sBLK2, sTB4, sBLK4, sTBA, sTBB = 28, 29, 30, 31, 32, 33
sD, sTO, sT0, sT1, sT2, sT3 = 40, 41, 42, 43, 46, 47
sHC, sHA, sHL0, sHL1, sD2, sD3 = 48, 49, 50, 51, 52, 53
RA = 120
sNO, sFL = 60, 61
sCB, sAV, sHC2, sP0 = 4, 19, 37, 6

PK = [54, 55, 48, 49, 50, 51, 36]
sW3A = 62

def v(a, n=4): return f'v[{a}:{a+n-1}]'
def ag(a, n=4): return f'a[{a}:{a+n-1}]'

class Gen:
    def __init__(self, name, cfg):
        self.a = Asm(); self.name = name; self.cfg = cfg; self.nl = 0; self.nstamp = 0; self.names = []; self.early = []; self.pf = cfg.get('pollfl', 'sc1').replace('+', ' '); self.af = cfg.get('atomfl', 'sc1').replace('+', ' ').replace('none', '')
    def label(self, s):
        self.nl += 1; return f'L_{s}_{self.nl}'
    def stamp(self, name='x'):
        if self.cfg.get('hold') == name:
            L = self.label('hold')
            self.a(f'{L}:\ns_memrealtime s[44:45]\ns_waitcnt lgkmcnt(0)\ns_sub_u32 s44, s44, s78\ns_cmp_lt_u32 s44, 6000\ns_cbranch_scc1 {L}')
        if not self.cfg.get('diag'): return
        if name.startswith('_') and not re.search(self.cfg.get('fine', '^$'), name): return
        if self.cfg.get('only') is not None and not name.endswith(str(self.cfg['only'])): return
        if self.cfg.get('pick') and not re.search(self.cfg['pick'], name): return
        self.names.append(name)
        a = self.a; k = self.nstamp; self.nstamp += 1
        if self.cfg.get('nb'):
            s = (list(range(64, 78, 2)) + list(range(80, 102, 2)))[len(self.early)]
            self.early.append((k, s)); a(f"{'s_memtime' if self.cfg.get('clk') else 's_memrealtime'} s[{s}:{s+1}]"); return
        a(f"{'s_memtime' if self.cfg.get('clk') else 's_memrealtime'} s[44:45]\ns_waitcnt lgkmcnt(0)\nv_writelane_b32 v0, s44, {k + 2}")
    def lds(self, off):
        base = (vL16, vLA, vLC)[off >> 16]
        return f'v{base} offset:{off & 0xffff}'
    def dma4(self, sl, lds_off, sg, g_off, tag):
        first = [f's_add_u32 m0, s{sl}, {lds_off}', f's_add_u32 s{sD}, s{sg}, {g_off}']
        g = []
        for k in range(4):
            ld = (f'buffer_load_dwordx4 v{vL16}, s[8:11], s{sD} offen offset:{1024*k} sc1 lds', tag)
            g.append((first if k == 0 else []) + [ld])
        return g
    def ld(self, dst, sbase, off, st, tag=None, va=vL16, sc=True):
        hi, lo = off & ~0xfff, off & 0xfff
        out = []
        if hi: out.append(f's_add_u32 s{st}, s{sbase}, {hi}'); s = st
        else: s = sbase
        out.append((f'buffer_load_dwordx4 {dst}, v{va}, s[8:11], s{s} offen offset:{lo}' + (' sc1' if sc else ''), tag))
        return out
    def peek(self, offs):
        o = []
        for k, so in enumerate(offs): o += [f's_mov_b32 s{PK[k]}, 0', f's_atomic_add s{PK[k]}, s[{sCB}:{sCB+1}], s{so} glc']
        return o
    def test(self, n, target, field=None):
        o = []
        for k in range(n):
            if field is not None: o.append(f's_bfe_u32 s{PK[k]}, s{PK[k]}, {(8 << 16) | (8 * field)}')
            o.append(f's_xor_b32 s{PK[k]}, s{PK[k]}, {target}')
            if k: o.append(f's_or_b32 s{PK[0]}, s{PK[0]}, s{PK[k]}')
        return o + [f's_cmp_eq_u32 s{PK[0]}, 0']
    def settle(self, offs, target, field=None, nap=0):
        L = self.label('spin'); D = self.label('ok'); t = self.test(len(offs), target, field)
        return t + [f's_cbranch_scc1 {D}', f's_mov_b32 s{sTO}, {TIMEOUT}', f'{L}:'] + ([f's_sleep {nap}'] if nap else []) + self.peek(offs) + ['s_waitcnt lgkmcnt(0) ; slow path'] + t + \
               [f's_cbranch_scc1 {D}', f's_sub_u32 s{sTO}, s{sTO}, 1', f's_cbranch_scc0 {L}', f'{D}:']
    def poll(self, offs, target, nap=0):
        self.a.extend(self.peek(offs) + self.settle(offs, target, nap=nap))
    def arrive_l(self, so, val=1, r=sAV):
        return [f's_mov_b32 s{r}, {val}', f's_atomic_add s{r}, s[{sCB}:{sCB+1}], s{so}']
    def arrive(self, so, val=1):
        self.a.extend(self.arrive_l(so, val))
    def publish(self, so):
        L = self.label('pub')
        return [f's_cmp_lg_u32 s{sW}, 0', f's_cbranch_scc1 {L}', 'v_mov_b32 v8, 0', f'v_mov_b32 v9, s{sNO}', 's_mov_b64 exec, 1',
                f'buffer_store_dword v9, v8, s[8:11], s{so} offen sc1 ; untracked', 's_mov_b64 exec, -1', f'{L}:']
    def vpeek(self, mask):
        return [f's_mov_b64 exec, {mask}', 'v_mov_b32 v9, 0', 'buffer_atomic_add v9, v7, s[8:11], 0 offen sc0 sc1', 's_mov_b64 exec, -1']
    def vsettle(self, mask):
        L = self.label('spin'); D = self.label('ok'); t = [f'v_cmp_ne_u32 vcc, s{sNO}, v9']
        return [f's_mov_b64 exec, {mask}'] + t + [f's_cbranch_vccz {D}', f's_mov_b32 s{sTO}, {TIMEOUT}', f'{L}:', 's_sleep 4', 'v_mov_b32 v9, 0', 'buffer_atomic_add v9, v7, s[8:11], 0 offen sc0 sc1',
                    's_waitcnt vmcnt(0) ; vslow path', 's_nop 0'] + t + [f's_cbranch_vccz {D}', f's_sub_u32 s{sTO}, s{sTO}, 1', f's_cbranch_scc0 {L}', f'{D}:', 's_mov_b64 exec, -1']

    def init(self):
        a = self.a; n = self.name
        prep2.WS_SIZE[0] = WS_END if not self.cfg.get('diag') else DBG + 0x40000
        a(f'.globl {n}\n.p2align 8\n.type {n},@function\n{n}:')
        a('s_cmp_lt_u32 s2, 256\ns_cbranch_scc1 L_main_go\ns_endpgm\nL_main_go:')
        a('s_load_dwordx2 s[32:33], s[0:1], 80\ns_load_dwordx16 s[16:31], s[0:1], 0')
        if self.cfg.get('diag') or self.cfg.get('hold'): a('s_memrealtime s[78:79]')
        a(f'v_lshrrev_b32 v5, 6, v0\nv_readfirstlane_b32 s{sW}, v5')
        if self.cfg.get('codepf', 1):
            a(f's_getpc_b64 s[44:45]\nL_pc:\ns_lshr_b32 s4, s2, 3\ns_lshl_b32 s4, s4, 2\ns_add_u32 s4, s4, s{sW}\ns_min_u32 s4, s4, (L_code_end-L_pc)/1024-1\ns_lshl_b32 s4, s4, 10')
            a('s_add_u32 s44, s44, s4\ns_addc_u32 s45, s45, 0\ns_and_b32 s44, s44, -16\nv_and_b32 v12, 63, v0\nv_lshlrev_b32 v12, 4, v12\nv_mov_b32 v13, s45\nv_add_co_u32 v12, vcc, s44, v12\nv_addc_co_u32 v13, vcc, 0, v13, vcc')
            a('global_load_dwordx4 v[252:255], v[12:13], off')
        a(f's_waitcnt lgkmcnt(0)\ns_add_u32 s54, s32, {NW}\ns_addc_u32 s55, s33, 0\ns_load_dword s{sNO}, s[54:55], 0')
        tg = self.cfg.get('touch', 0)
        if tg:
            a(f's_load_dwordx2 s[6:7], s[0:1], 64\ns_mov_b32 s48, s32\ns_and_b32 s49, s33, 0xffff\ns_mov_b32 s50, {WS_END}\ns_mov_b32 s51, 0x20000')
            a(f'v_lshlrev_b32 v12, {tg}, v0\nv_add_u32 v12, 0x1f80, v12\nv_mov_b32 v251, 0\nbuffer_load_dword v251, v12, s[48:51], 0 offen sc1')
            a(f's_waitcnt lgkmcnt(0)\ns_mov_b32 s48, s6\ns_and_b32 s49, s7, 0xffff\ns_mov_b32 s50, {2048*512*2}\nbuffer_load_dword v250, v12, s[48:51], 0 offen sc1')
        a.forget()
        st = None; fine = self.cfg.get('diag') and 'prep' in self.cfg.get('fine', '')
        def early(name, s):
            self.early.append((self.nstamp, s)); self.names.append(name); self.nstamp += 1
            return f's_memrealtime s[58:59]\ns_waitcnt lgkmcnt(0)\ns_mov_b32 s{s}, s58'
        if fine: st = early('_prep.loaded0', 96)
        prep2.emit_prep(a, stamp=st, l2pf=self.cfg.get('l2pf', 1))
        if fine: a(early('_prep.st0', 97))
        a(f's_load_dwordx2 s[6:7], s[0:1], 64\ns_mov_b64 s[{sCB}:{sCB+1}], s[32:33]\ns_mov_b32 s92, s12\ns_mov_b32 s93, s13\ns_mov_b32 s94, s14\ns_mov_b32 s95, 0x20000')
        a('v_and_b32 v6, 63, v0\nv_lshlrev_b32 v1, 4, v6')
        if self.cfg.get('map', 'B') == 'A':
            a(f's_and_b32 s{sT0}, s2, 7\ns_lshr_b32 s{sT1}, s2, 3\ns_lshr_b32 s{sR}, s{sT1}, 4\ns_lshl_b32 s{sT0}, s{sT0}, 1\ns_add_u32 s{sR}, s{sR}, s{sT0}\ns_and_b32 s{sJ}, s{sT1}, 15')
        else:
            a(f's_and_b32 s{sT0}, s2, 7\ns_lshr_b32 s{sT1}, s2, 3\ns_lshr_b32 s{sR}, s{sT1}, 3\ns_lshr_b32 s{sT2}, s{sT0}, 1\ns_lshl_b32 s{sT2}, s{sT2}, 2\ns_add_u32 s{sR}, s{sR}, s{sT2}')
            a(f's_and_b32 s{sJ}, s{sT1}, 7\ns_and_b32 s{sT0}, s{sT0}, 1\ns_lshl_b32 s{sT0}, s{sT0}, 3\ns_add_u32 s{sJ}, s{sJ}, s{sT0}')
        a(f's_lshl_b32 s{sL4K}, s{sW}, 12\ns_lshl_b32 s{sL16K}, s{sW}, 14')
        a(f's_mul_i32 s{sW1}, s{sJ}, {96*1024}\ns_add_u32 s{sW1}, s{sW1}, s{sL4K}')
        a(f's_lshl_b32 s{sTB}, s{sR}, 2\ns_add_u32 s{sTB}, s{sTB}, s{sW}\ns_lshl_b32 s{sXB}, s{sTB}, 15\ns_lshl_b32 s{sSTB}, s{sTB}, 12')
        a(f's_waitcnt lgkmcnt(0)\ns_add_u32 s{sNO}, s{sNO}, 1')
        self.init2()
        a(f's_mul_i32 s{sT0}, s{sJ}, 7\ns_add_u32 s{sT0}, s{sT0}, 48\ns_lshr_b32 s{sT1}, s{sBLK4}, 1\ns_mul_i32 s{sT1}, s{sT1}, 7\ns_add_u32 s{sT1}, s{sT1}, 153\ns_sub_u32 s{sT2}, s{sJ}, 224')
        a(f'v_and_b32 v6, 63, v0\nv_add_u32 v8, s{sT0}, v6\nv_add_u32 v9, s{sT1}, v6\nv_lshl_add_u32 v10, v6, 4, s{sT2}\nv_cmp_lt_u32 vcc, 6, v6\nv_cndmask_b32 v8, v8, v9, vcc\nv_cmp_lt_u32 vcc, 13, v6\nv_cndmask_b32 v8, v8, v10, vcc')
        a(f'v_lshlrev_b32 v8, 7, v8\nv_add_u32 v8, {FL}, v8\nv_accvgpr_write_b32 a{aNCF}, v8')
        a(f's_and_b32 s{sT0}, s{sJ}, 3\ns_lshl_b32 s{sT0}, s{sT0}, 1\ns_lshl_b32 s{sT1}, s{sW}, 3\ns_add_u32 s{sT0}, s{sT0}, s{sT1}\ns_add_u32 s{sT0}, s{sT0}, 192\ns_lshl_b32 s{sT0}, s{sT0}, 7\ns_add_u32 s98, s{sT0}, {FLX}')
        a('s_add_u32 s99, s98, 4096\ns_add_u32 s100, s98, 128\ns_add_u32 s101, s98, 4224')
        offs = [sT0, sT1, sT2, sT3, sD2, sD3, sD]
        a(f's_and_b32 s{sT0}, s{sJ}, 1\ns_lshl_b32 s{sT0}, s{sT0}, 5\ns_lshr_b32 s{sT1}, s{sJ}, 1\ns_add_u32 s{sT0}, s{sT0}, s{sT1}\ns_lshl_b32 s{sT1}, s{sW}, 3\ns_add_u32 s{sT0}, s{sT0}, s{sT1}')
        a(f's_lshl_b32 s{sT0}, s{sT0}, 7\ns_add_u32 s{sT0}, s{sT0}, {FLX}\ns_add_u32 s{sT1}, s{sT0}, 8192\ns_add_u32 s{sT2}, s{sT0}, 16384')
        a(f's_lshl_b32 s{sT3}, s{sTB}, 9\ns_add_u32 s{sT3}, s{sT3}, {FLX}\ns_add_u32 s{sD2}, s{sT3}, 128\ns_add_u32 s{sD3}, s{sT3}, 256\ns_add_u32 s{sD}, s{sT3}, 384')
        a(f's_lshl_b32 s34, s2, 7\ns_add_u32 s34, s34, {FLX}')
        a('s_waitcnt vmcnt(0)\ns_barrier')
        a.extend(self.publish(34))
        a.forget()
        self.stamp('_prep.pub0')
        prep2.gather(a)
        P = prep2
        for mb in range(4):
            d = 96 + 16 * mb
            a(f'{M32} {v(d,16)}, {ag(P.NCA+8*mb)}, {ag(P.NCB)}, 0\n{M32} {v(d,16)}, {ag(P.NCA+8*mb+4)}, {ag(P.NCB+4)}, {v(d,16)}')
        a(f's_lshl_b32 s34, s{sW}, 8\nv_add_u32 v34, {LB}, v{vL4}\nv_add_u32 v35, s34, v34\nv_pk_add_f32 v[32:33], v[96:97], v[98:99]')
        for r in range(100, 160, 2): a(f'v_pk_add_f32 v[32:33], v[32:33], v[{r}:{r+1}]')
        a('v_add_f32 v32, v32, v33\nv_mov_b32 v33, v32\nv_permlane32_swap_b32 v32, v33\nv_add_f32 v32, v32, v33\nds_write_b32 v35, v32')
        a.drain(lgkm=True)
        a('s_barrier\nds_read2st64_b32 v[36:37], v34 offset0:0 offset1:1\nds_read2st64_b32 v[38:39], v34 offset0:2 offset1:3')
        a(f'v_pk_add_f32 v[36:37], v[36:37], v[38:39]\nv_add_f32 v36, v36, v37\nv_mul_f32 v36, s{P.NCM}, v36')
        a.extend(self.peek(offs))
        for k in range(8):
            s = 96 + 8 * k
            for q in range(4): a(f'v_pk_add_f32 v[{s+2*q}:{s+2*q+1}], v[{s+2*q}:{s+2*q+1}], v[36:37] op_sel_hi:[1,0]')
            for q in range(4): a(f'v_cvt_pk_bf16_f32 v{40+4*k+q}, v{s+2*q}, v{s+2*q+1}')
            a(f'buffer_store_dwordx4 {v(40+4*k)}, v{vL16}, s[{P.NCS}:{P.NCS+3}], s{P.NCD+k} offen sc1')
        self.stamp('_prep.ncst0')
        a.extend(self.settle(offs, f's{sNO}', nap=self.cfg.get('nap0', 2)))
        a('s_barrier')
    def init2(self):
        a = self.a
        srd(a, 12, 6, 2048 * 512 * 2)
        a(f's_mul_i32 s{sW3}, s{sJ}, {224*1024}\ns_add_u32 s{sW3}, s{sW3}, {W3}')
        a(f's_and_b32 s{sT0}, s{sJ}, 3\ns_lshl_b32 s{sT0}, s{sT0}, 2\ns_add_u32 s{sBLK2}, s{sT0}, s{sW}\ns_lshl_b32 s{sW2}, s{sBLK2}, 15\ns_add_u32 s{sW2}, s{sW2}, {W2}')
        a(f's_lshr_b32 s{sT0}, s{sJ}, 2\ns_lshl_b32 s{sTB2}, s{sR}, 2\ns_add_u32 s{sTB2}, s{sTB2}, s{sT0}')
        a(f's_and_b32 s{sT0}, s{sJ}, 7\ns_lshl_b32 s{sT1}, s{sT0}, 2\ns_add_u32 s{sT1}, s{sT1}, s{sW}\ns_mul_i32 s{sW4}, s{sT1}, {56*1024}\ns_add_u32 s{sW4}, s{sW4}, {W4}')
        a(f's_lshl_b32 s{sT0}, s{sT0}, 1\ns_and_b32 s{sT1}, s{sW}, 1\ns_add_u32 s{sBLK4}, s{sT0}, s{sT1}')
        a(f's_lshr_b32 s{sT0}, s{sJ}, 3\ns_lshl_b32 s{sT0}, s{sT0}, 1\ns_lshl_b32 s{sT1}, s{sR}, 2\ns_add_u32 s{sT0}, s{sT0}, s{sT1}')
        a(f's_lshr_b32 s{sT1}, s{sW}, 1\ns_add_u32 s{sTB4}, s{sT0}, s{sT1}\ns_xor_b32 s{sT1}, s{sT1}, 1\ns_add_u32 s{sTBB}, s{sT0}, s{sT1}\ns_mov_b32 s{sTBA}, s{sTB4}')
        a(f'v_add_u32 v{vLA}, 0x10000, v1\nv_add_u32 v{vLC}, 0x20000, v1\nv_lshlrev_b32 v{vL4}, 2, v6')
        a('v_and_b32 v7, 31, v6\nv_lshrrev_b32 v8, 5, v6\nv_bfe_u32 v9, v6, 2, 1\nv_bfe_u32 v10, v6, 3, 1\nv_bfe_u32 v11, v6, 4, 1\nv_and_b32 v12, 3, v6')
        a('v_and_b32 v13, 15, v6\nv_lshrrev_b32 v14, 4, v6')
        a(f's_add_u32 s{sT0}, s{sL16K}, {LB}')
        def park(dst): a(f'v_accvgpr_write_b32 a{dst}, v15')
        a(f'v_lshlrev_b32 v15, 4, v7\nv_lshl_add_u32 v15, v8, 10, v15\nv_add_u32 v15, s{sT0}, v15'); park(aKVW)
        a(f'v_lshl_add_u32 v15, v10, 2, v12\nv_lshl_add_u32 v15, v9, 3, v15\nv_lshl_add_u32 v15, v8, 4, v15\nv_lshl_add_u32 v15, v11, 5, v15\nv_lshlrev_b32 v15, 2, v15\nv_add_u32 v15, s{sT0}, v15'); park(aZW)
        a(f'v_lshl_add_u32 v15, v13, 1, v8\nv_lshlrev_b32 v15, 2, v15\nv_add_u32 v15, s{sT0}, v15'); park(aRSW)
        a(f'v_lshlrev_b32 v15, 4, v8\nv_add_u32 v15, s{sT0}, v15'); park(aRSV)
        a('v_and_b32 v15, 1, v6\nv_lshlrev_b32 v15, 5, v15\nv_lshrrev_b32 v16, 1, v7\nv_add_u32 v15, v15, v16\nv_lshlrev_b32 v15, 2, v15'); park(aBP)
        a('v_lshl_add_u32 v15, v7, 1, v8\nv_lshlrev_b32 v15, 2, v15'); park(aST4)
        a('v_lshlrev_b32 v15, 10, v7\nv_lshl_add_u32 v15, v8, 4, v15'); park(aOUT)
        a(f'v_add_u32 v15, s{sT0}, v1'); park(aOWN)
        a('v_mov_b32 v15, v11'); park(aC4)
        a(f's_lshl_b32 s{sT1}, s{sW}, 9\ns_add_u32 s{sT1}, s{sT1}, {TOT}\nv_lshlrev_b32 v15, 4, v7\nv_lshl_add_u32 v15, v8, 3, v15\nv_add_u32 v15, s{sT1}, v15'); park(aTW)
        a(f'v_cmp_eq_u32 vcc, v9, v8\nv_lshrrev_b32 v16, 3, v7\nv_lshl_add_u32 v16, v16, 2, v12\nv_lshl_add_u32 v16, v8, 4, v16\nv_lshlrev_b32 v16, 4, v16\nv_add_u32 v16, {TOT}, v16')
        a(f'v_mov_b32 v17, {ZERO}\nv_cndmask_b32 v15, v17, v16, vcc'); park(aKVA)
        a(f'v_lshlrev_b32 v16, 6, v8\nv_add_u32 v16, s{sT0}, v16\nv_add_u32 v16, {ZPRIV}, v16\nv_cndmask_b32 v15, v17, v16, vcc'); park(aZA)
        a(f'v_lshl_add_u32 v15, v13, 2, v14\nv_lshlrev_b32 v15, 1, v15\nv_add_u32 v15, s{sT0}, v15\nv_add_u32 v15, {ZPRIV}, v15'); park(aZB)
        a('v_lshl_add_u32 v16, v10, 2, v12\nv_cmp_eq_u32 vcc, v11, v8\nv_cndmask_b32 v17, 0, 1, vcc\nv_and_b32 v18, v17, v9\nv_sub_u32 v17, v17, v18')
        onehot(a, 20, 16, 17, 28); onehot(a, 24, 16, 18, 28)
        for q in range(8): a(f'v_accvgpr_write_b32 a{SEL0+q}, v{20+q}')

    def stat_loads(self, xi):
        out = [f's_add_u32 s{sT0}, s{sSTB}, {ST + xi*0x40000}']
        for i in range(4): out.append(f'buffer_load_dwordx4 {v(96+4*i)}, v{vL16}, s[8:11], s{sT0} offen offset:{1024*i} sc1')
        return out
    def rstd(self):
        o = []
        for k in range(4): o += [f'v_add_f32 v{96+k}, v{96+k}, v{100+k}', f'v_add_f32 v{104+k}, v{104+k}, v{108+k}']
        for k in range(4): o += [f'v_add_f32 v{96+k}, v{96+k}, v{104+k}']
        o += ['v_permlane32_swap_b32 v96, v98', 'v_permlane32_swap_b32 v97, v99', 'v_add_f32 v96, v96, v98', 'v_add_f32 v97, v97, v99',
              'v_permlane16_swap_b32 v96, v97', 'v_add_f32 v96, v96, v97', 'v_mov_b32 v97, v96', 'v_permlane16_swap_b32 v96, v97',
              'v_mul_f32 v96, 0x3b000000, v96', 'v_mul_f32 v97, 0x3b000000, v97', 'v_fma_f32 v97, -v96, v96, v97',
              'v_max_f32 v97, 0, v97', 'v_add_f32 v97, 0x3727c5ac, v97', 'v_rsq_f32 v96, v97']
        return o
    def xload(self, xi, s):
        return self.ld(v(XR + 4 * s), sT3, 1024 * s, sT1)
    def features(self, p, en, dst, t):
        mx, mn = t, t + 1; sp, sn = t + 2, t + 4
        pr = lambda r: f'v[{r}:{r+1}]'
        o = [f'v_max3_f32 v{mx}, v{p}, v{p+1}, v{p+2}', f'v_min3_f32 v{mn}, v{p}, v{p+1}, v{p+2}']
        for k in range(3, 15, 2):
            o += [f'v_max3_f32 v{mx}, v{mx}, v{p+k}, v{p+k+1}', f'v_min3_f32 v{mn}, v{mn}, v{p+k}, v{p+k+1}']
        o += [f'v_max_f32 v{mx}, v{mx}, v{p+15}', f'v_min_f32 v{mn}, v{mn}, v{p+15}']
        o += [f'v_mul_f32 v{mx}, -v5, v{mx}', f'v_mul_f32 v{mn}, v5, v{mn}']
        for k in range(0, 16, 2):
            o += [f'v_pk_fma_f32 {pr(en+k)}, {pr(p+k)}, v[4:5], {pr(t)} op_sel:[0,1,1] op_sel_hi:[1,1,1] neg_lo:[0,1,0] neg_hi:[0,1,0]',
                  f'v_pk_fma_f32 {pr(p+k)}, {pr(p+k)}, v[4:5], {pr(t)} op_sel:[0,1,0] op_sel_hi:[1,1,0]']
            if k: o += [f'v_exp_f32 v{x}, v{x}' for x in (p + k - 2, p + k - 1, en + k - 2, en + k - 1)]
        o += [f'v_exp_f32 v{x}, v{x}' for x in (p + 14, p + 15, en + 14, en + 15)]
        o += [f'v_pk_add_f32 {pr(sp)}, {pr(p)}, {pr(p+2)}', f'v_pk_add_f32 {pr(sn)}, {pr(en)}, {pr(en+2)}']
        for k in range(4, 16, 2):
            o += [f'v_pk_add_f32 {pr(sp)}, {pr(sp)}, {pr(p+k)}', f'v_pk_add_f32 {pr(sn)}, {pr(sn)}, {pr(en+k)}']
        o += [f'v_add_f32 v{sp}, v{sp}, v{sp+1}', f'v_add_f32 v{sn}, v{sn}, v{sn+1}', f'v_rcp_f32 v{sp}, v{sp}', f'v_rcp_f32 v{sn}, v{sn}']
        groups = []
        for (src, sc, d) in ((p, sp, dst), (en, sn, dst + 8)):
            for g in range(2):
                q4 = range(4 * g, 4 * g + 4)
                groups.append([f'v_pk_mul_f32 {pr(src+2*q)}, {pr(src+2*q)}, {pr(sc)} op_sel_hi:[1,0]' for q in q4] +
                              [f'v_cvt_pk_bf16_f32 v{d+q}, v{src+2*q}, v{src+2*q+1}' for q in q4])
        return o, groups
    def unpack(self, src, dst, wr=None):
        o = []
        for q in range(8):
            o += [f'v_lshlrev_b32 v{dst(2*q)}, 16, v{src+q}', f'v_and_b32 v{dst(2*q+1)}, 0xffff0000, v{src+q}']
        return o

    def p1(self, l):
        a = self.a; xi = 2 * l; NX0 = 14; PD = 7
        aK, aV, aQ, WB = 16, 32, 48, 64
        def w1dma(q):
            g = self.dma4(sT2, 24576 * q, sD2, W1U + 24576 * q, f'w1_{q}')
            g2 = self.dma4(sT2, 24576 * q + 4096, sD2, W1U + 24576 * q + 4096, f'w1_{q}')[:2]
            return g + g2
        ins = {}
        def put(n, x): ins.setdefault(n, []).extend(x if isinstance(x, list) else [x])
        a(f's_add_u32 s{sT3}, s{sXB}, {X + xi*0x200000}')
        if l == 0:
            a(f's_mul_i32 s{sT2}, s{sW}, 6144\ns_mul_i32 s{sD2}, s{sJ}, {96*1024}\ns_add_u32 s{sD2}, s{sD2}, s{sT2}')
            self.stamp(f'p1.start{l}')
            a.extend(sum(w1dma(0), []))
            for s in range(8): a.extend(self.xload(xi, s))
            a.extend(sum(w1dma(1), []))
            seq = [self.xload(xi, s) for s in range(8, 16)]
            for q in (2, 3): seq += w1dma(q) + [self.xload(xi, s) for s in range(8 * q, 8 * q + 8)]
            a('v_mov_b32 v5, 0x3fb8aa3b')
            for k, g in enumerate(seq): put(k + (k >> 1), g)
            for q in (1, 2, 3): put(24 * q - PD - 1, [('wait_tag', f'w1_{q}'), 's_barrier'])
            a.wait_tag('w1_0')
            put(16, self.publish(prep2.SJOB))
            put(36, self.peek([98, 99, 100, 101])); put(54, self.settle([98, 99, 100, 101], f's{sNO}'))
            nk = self.cfg.get('nck', 56)
            put(nk, [f'v_accvgpr_read_b32 v7, a{aNCF}', 's_mov_b32 s34, 0x11111', f's_lshl_b32 s34, s34, s{sW}', 's_and_b32 s34, s34, 0x1ffff', 's_mov_b32 s35, 0'] + self.vpeek('s[34:35]'))
            put(95, self.vsettle('s[34:35]'))
            n_w2 = 60
        else:
            a(f's_lshl_b32 s{sT0}, s{sTB}, 7\ns_add_u32 s{sT0}, s{sT0}, {X2C}')
            self.poll([sT0], 16)
            a.wait_tag('w1')
            self.stamp(f'p1.start{l}')
            for s in range(NX0): a.extend(self.xload(xi, s))
            for s in range(NX0, 32): put(3 * (s - NX0), self.xload(xi, s))
            put(4, self.stat_loads(xi))
            n_w2 = 54
        a('s_barrier')
        if l:
            rs = [f'v_accvgpr_read_b32 v7, a{aRSW}', f'v_accvgpr_read_b32 v9, a{aBP}'] + self.rstd() + [f'ds_write_b32 v7, v96 offset:{0x3000}', 'ds_bpermute_b32 v5, v9, v96',
                  f'v_accvgpr_read_b32 v8, a{aRSV}']
            for k, x in enumerate(rs): put(36 + k, x)
            put(92, 'v_mul_f32 v5, 0x3fb8aa3b, v5')
        w2l = [self.ld(v(XR + 4 * s), sW2, 1024 * s, sT1) for s in range(32)]
        nw2 = 0
        for n in range(n_w2, 96, self.cfg.get('w2step', 3)):
            assert 3 * nw2 + 2 <= n
            put(n, w2l[nw2]); nw2 += 1
        rd = lambda n: f'ds_read_b128 {v(WB + 4*(n%8))}, {self.lds(1024*n)}'
        for n in range(PD): a(rd(n))
        for n in range(96):
            s, T = divmod(n, 3); acc = (aK, aV, aQ)[T]; w = v(WB + 4 * (n % 8)); x = v(XR + 4 * s)
            c = v(acc, 16) if s else '0'
            a(f'{M32} {v(acc,16)}, {x}, {w}, {c}' if T == 1 else f'{M32} {v(acc,16)}, {w}, {x}, {c}')
            if n + PD < 96: a(rd(n + PD))
            a.extend(ins.get(n, []))
        self.stamp(f'p1.gemm{l}')
        a('s_barrier')
        a(f's_add_u32 s{sW3A}, s{sW3}, s{sL4K}')
        w3a = sum([self.dma4(sL4K, 16384 * b, sW3A, 16384 * b, 'w3a') for b in range(6)], [])
        pre = w2l[nw2:] + w3a
        ev = self.cfg.get('pace1', 10)
        def paced(body, start=4, extra=()):
            ex = dict(extra)
            for k, x in enumerate(body):
                a.extend([x])
                if k in ex: a.extend([ex[k]])
                elif k >= start and (k - start) % ev == 0 and pre: a.extend(pre.pop(0))
        kf, kg = self.features(aK, 96, 64, 10)
        qf, qg = self.features(aQ, 96, 112, 10)
        if l:
            for q in range(4): a(f'ds_read_b128 {v(112+4*q)}, v8 offset:{0x3000 + 32*q}')
        paced(kf + kg[0] + kg[2])
        self.stamp(f'_p1.kfeat{l}')
        a(f'{M32} {v(80,16)}, {v(64)}, {ag(SEL0)}, 0')
        a.extend(kg[1])
        a(f'{M32} {v(80,16)}, {v(68)}, {ag(SEL1)}, {v(80,16)}')
        a.extend(kg[3])
        a(f'{M32} {v(16,16)}, {v(72)}, {ag(SEL0)}, 0\n{M32} {v(16,16)}, {v(76)}, {ag(SEL1)}, {v(16,16)}')
        body = [f'v_pk_mul_f32 v[{aV+2*q}:{aV+2*q+1}], v[{aV+2*q}:{aV+2*q+1}], v[{112+2*q}:{113+2*q}]' for q in range(8)] if l else []
        body += [f'v_cvt_pk_bf16_f32 v{aV+q}, v{aV+2*q}, v{aV+2*q+1}' for q in range(8)]
        body += [f'v_cvt_pk_bf16_f32 v{64+q}, v{80+2*q}, v{81+2*q}' for q in range(8)]
        body += [f'{M32} {v(112,16)}, {v(64)}, {v(32)}, 0', f'{M32} {v(112,16)}, {v(68)}, {v(36)}, {v(112,16)}']
        body += [f'v_cvt_pk_bf16_f32 v{72+q}, v{16+2*q}, v{17+2*q}' for q in range(8)]
        body += [f'{M32} {v(96,16)}, {v(72)}, {v(32)}, 0', f'{M32} {v(96,16)}, {v(76)}, {v(36)}, {v(96,16)}']
        body += ['v_pk_add_f32 v[8:9], v[80:81], v[82:83]', 'v_pk_add_f32 v[40:41], v[16:17], v[18:19]']
        for k in range(4, 16, 2): body += [f'v_pk_add_f32 v[8:9], v[8:9], v[{80+k}:{81+k}]', f'v_pk_add_f32 v[40:41], v[40:41], v[{16+k}:{17+k}]']
        body += ['v_add_f32 v8, v8, v9', 'v_add_f32 v9, v40, v41', f'v_accvgpr_read_b32 v6, a{aZW}', f'v_accvgpr_read_b32 v7, a{aC4}']
        paced(body, start=self.cfg.get('kstart', 4))
        a('v_permlane32_swap_b32 v8, v9\nv_cmp_ne_u32 vcc, 0, v7\nv_add_f32 v8, v8, v9')
        a(f'v_accvgpr_read_b32 v7, a{aKVW}\nds_write_b32 v6, v8 offset:4096')
        for i in range(8): a(f'v_cndmask_b32 v{16+i}, v{112+i}, v{120+i}, vcc')
        a(f'ds_write_b128 v7, {v(16)}\nds_write_b128 v7, {v(20)} offset:512')
        for i in range(8): a(f'v_cndmask_b32 v{24+i}, v{96+i}, v{104+i}, vcc')
        a(f'ds_write_b128 v7, {v(24)} offset:2048\nds_write_b128 v7, {v(28)} offset:2560')
        a(f's_lshl_b32 s{sT0}, s{sW}, 10\nv_add_u32 v6, s{sT0}, v{vL16}\nv_add_u32 v7, {LB}, v6\nv_add_u32 v8, {LB + 4096}, v{vL4}')
        a(f's_lshl_b32 s{sT0}, s{sJ}, 4\ns_add_u32 s{sT0}, s{sT0}, s{sR}\ns_lshl_b32 s{sD2}, s{sT0}, 8\ns_add_u32 s{sD2}, s{sD2}, {ZP + l*0x10000}\ns_lshl_b32 s{sT0}, s{sT0}, 12\ns_add_u32 s{sT0}, s{sT0}, {PART + l*0x100000}')
        a(f's_lshl_b32 s{sT1}, s{sW}, 4\ns_mov_b64 s[34:35], 0xffff\ns_lshl_b64 s[34:35], s[34:35], s{sT1}')
        a.extend(qf[:10])
        a.drain(lgkm=True)
        self.stamp(f'_p1.kvlds{l}')
        a('s_barrier')
        for w in range(4): a(f'ds_read_b128 {v(64+4*w)}, v7 offset:{16384*w}')
        a('ds_read2st64_b32 v[80:81], v8 offset0:0 offset1:64\nds_read2st64_b32 v[82:83], v8 offset0:128 offset1:192')
        a.extend(qf[10:22])
        a('v_pk_add_f32 v[64:65], v[64:65], v[68:69]\nv_pk_add_f32 v[66:67], v[66:67], v[70:71]\nv_pk_add_f32 v[72:73], v[72:73], v[76:77]\nv_pk_add_f32 v[74:75], v[74:75], v[78:79]')
        a('v_pk_add_f32 v[64:65], v[64:65], v[72:73]\nv_pk_add_f32 v[66:67], v[66:67], v[74:75]')
        a(f'buffer_store_dwordx4 {v(64)}, v6, s[8:11], s{sT0} offen sc1', 'pub')
        a('v_pk_add_f32 v[80:81], v[80:81], v[82:83]\nv_add_f32 v80, v80, v81\ns_mov_b64 exec, s[34:35]')
        a(f'buffer_store_dword v80, v{vL4}, s[8:11], s{sD2} offen sc1', 'pub')
        a('s_mov_b64 exec, -1')
        self.stamp(f'p1.partial{l}')
        paced(qf[22:] + sum(qg, []), start=self.cfg.get('qstart', 4))
        a(f's_lshl_b32 s{sT0}, s{sW}, 4\ns_add_u32 s{sT0}, s{sT0}, s{sJ}\ns_lshl_b32 s{sT0}, s{sT0}, 7\ns_add_u32 s{sD2}, s{sT0}, {KVD + l*0x2000}')
        a.wait_tag('pub')
        a('s_barrier')
        self.arrive(sD2)
        self.stamp(f'p1.arrive{l}')
        npre = self.cfg.get('npre1', 4)
        for g in pre[:npre]: a.extend(g)
        self.pre = pre[npre:]
        a(f'v_mov_b32 v64, 0\nv_mov_b32 v65, 0\nv_mov_b32 v66, 0\nv_mov_b32 v67, 0\nds_write_b128 v{vLA}, {v(64)} offset:{ZERO - 0x10000}\nds_write_b128 v{vLA}, {v(64)} offset:{ZERO - 0x10000 + 1024}')
        a(f's_lshl_b32 s{sT0}, s{sJ}, 16\ns_lshl_b32 s{sT1}, s{sW}, 10\ns_add_u32 s{sT0}, s{sT0}, s{sT1}\ns_add_u32 s{sT3}, s{sT0}, {PART + l*0x100000}')
        a(f's_lshl_b32 s{sT0}, s{sJ}, 12\ns_add_u32 s{sT0}, s{sT0}, {ZP + l*0x10000}')
        self.poll([sD2], 16)
        self.stamp(f'o.flag{l}')
        for k in range(4): a(f'buffer_load_dwordx4 {v(16+4*k)}, v{vL16}, s[8:11], s{sT0} offen offset:{1024*k} sc1')
        for r in range(16): a.extend(self.ld(v(32 + 4 * r), sT3, 4096 * r, sT1))
        for _ in range(min(self.cfg.get('nmid', 0), len(self.pre))): a.extend(self.pre.pop(0))
        a(f'v_accvgpr_read_b32 v8, a{aZB}\nv_accvgpr_read_b32 v9, a{aTW}\nv_accvgpr_read_b32 v10, a{aZA}\nv_accvgpr_read_b32 v11, a{aKVA}')
        a('v_pk_add_f32 v[16:17], v[16:17], v[20:21]\nv_pk_add_f32 v[18:19], v[18:19], v[22:23]\nv_pk_add_f32 v[24:25], v[24:25], v[28:29]\nv_pk_add_f32 v[26:27], v[26:27], v[30:31]')
        a('v_pk_add_f32 v[16:17], v[16:17], v[24:25]\nv_pk_add_f32 v[18:19], v[18:19], v[26:27]')
        a('v_permlane32_swap_b32 v16, v18\nv_permlane32_swap_b32 v17, v19\nv_add_f32 v16, v16, v18\nv_add_f32 v17, v17, v19')
        a('v_permlane16_swap_b32 v16, v17\nv_add_f32 v16, v16, v17\nv_cvt_pk_bf16_f32 v16, v16, v16\nds_write_b16 v8, v16')
        for r in range(1, 16):
            a(f'v_pk_add_f32 v[32:33], v[32:33], v[{32+4*r}:{33+4*r}]\nv_pk_add_f32 v[34:35], v[34:35], v[{34+4*r}:{35+4*r}]')
        a('v_cvt_pk_bf16_f32 v32, v32, v33\nv_cvt_pk_bf16_f32 v33, v34, v35\nds_write_b64 v9, v[32:33]')
        a.drain(lgkm=True)
        a('s_barrier')
        self.stamp(f'_o.tot{l}')
        ZSTEP = 16
        for g in range(4): a(f'ds_read_b128 {v(64+4*g)}, v10 offset:{ZSTEP*g}')
        for g in range(4): a(f'ds_read_b128 {v(80+4*g)}, v11 offset:{512*g}')
        a(f's_lshl_b32 s{sT0}, s{sJ}, 11\ns_add_u32 s{sT0}, s{sT0}, s{sXB}\ns_add_u32 s{sT0}, s{sT0}, {OF + l*0x200000}')
        a(f's_lshl_b32 s{sT1}, s{sTB}, 2\ns_lshr_b32 s{sD2}, s{sJ}, 2\ns_add_u32 s{sD2}, s{sD2}, s{sT1}\ns_lshl_b32 s{sD2}, s{sD2}, 7\ns_add_u32 s{sD2}, s{sD2}, {OC + l*0x8000}')
        for g in range(4): a(f'{M32} {v(32,16)}, {v(64+4*g)}, {v(112+4*g)}, {v(32,16) if g else "0"}')
        for g in range(4): a(f'{M32} {v(16,16)}, {v(80+4*g)}, {v(112+4*g)}, {v(16,16) if g else "0"}')
        a('v_add_f32 v32, 0x358637bd, v32\nv_rcp_f32 v32, v32')
        for u in range(2):
            for q in range(4): a(f'v_pk_mul_f32 v[{16+8*u+2*q}:{17+8*u+2*q}], v[{16+8*u+2*q}:{17+8*u+2*q}], v[32:33] op_sel_hi:[1,0]')
            for q in range(4): a(f'v_cvt_pk_bf16_f32 v{40+4*u+q}, v{16+8*u+2*q}, v{17+8*u+2*q}')
            a(f'buffer_store_dwordx4 {v(40+4*u)}, v{vL16}, s[8:11], s{sT0} offen offset:{1024*u} sc1', 'pub')
        self.stamp(f'_o.st{l}')
        if l:
            a(f's_lshl_b32 s{sT0}, s{sTB2}, 15\ns_lshl_b32 s{sT1}, s{sBLK2}, 11\ns_add_u32 s{sT0}, s{sT0}, s{sT1}\ns_add_u32 s{sT0}, s{sT0}, {X + xi*0x200000}')
            a(f'buffer_load_dwordx4 {v(8)}, v{vL16}, s[8:11], s{sT0} offen sc1\nbuffer_load_dwordx4 {v(12)}, v{vL16}, s[8:11], s{sT0} offen offset:1024 sc1')
        else:
            a(f'v_accvgpr_read_b32 v7, a{aOUT}\ns_lshl_b32 s{sT0}, s{sTB2}, 15\ns_lshl_b32 s{sT1}, s{sBLK2}, 6\ns_add_u32 s{sT0}, s{sT0}, s{sT1}')
            a(f'buffer_load_dwordx4 {v(8)}, v7, s[92:95], s{sT0} offen\nbuffer_load_dwordx4 {v(12)}, v7, s[92:95], s{sT0} offen offset:32')
        npre = self.cfg.get('npre2', 0)
        for g in self.pre[:npre]: a.extend(g)
        a.wait_tag('pub')
        self.arrive(sD2)
        self.stamp(f'o.arrive{l}')
        for g in self.pre[npre:]: a.extend(g)
        self.npost1 = len(self.pre[npre:])
        a.extend(self.unpack(8, lambda k: 16 + k))

    def red_addr(self, owner_fn):
        a = self.a
        for q in range(1, 4):
            owner_fn(q)
            a(f's_lshl_b32 s{sT0}, s{sT0}, 14\ns_add_u32 s{sT0}, s{sT0}, {LB + (q-1)*4096}\nv_add_u32 v{RA+q-1}, s{sT0}, v{vL16}')
    def red_write(self, q, u, src): return f'ds_write_b128 v{RA+q-1}, {src} offset:{1024*u}'
    def red_finish(self, own):
        a = self.a
        a(f'v_accvgpr_read_b32 v5, a{aOWN}')
        a.drain(lgkm=True)
        a('s_barrier')
        for q in range(3):
            for u in range(4): a(f'ds_read_b128 {v(80 + 16*q + 4*u)}, v5 offset:{4096*q + 1024*u}')
        for q in range(3):
            for k in range(0, 16, 2): a(f'v_pk_add_f32 v[{own+k}:{own+k+1}], v[{own+k}:{own+k+1}], v[{80+16*q+k}:{81+16*q+k}]')
    def tile_out(self, sx, sst, vaddr, srd_, off2, sc):
        a = self.a
        for u in range(2):
            for q in range(4): a(f'v_cvt_pk_bf16_f32 v{32+4*u+q}, v{16+8*u+2*q}, v{17+8*u+2*q}')
            a(f'buffer_store_dwordx4 {v(32+4*u)}, v{vaddr}, s[{srd_}:{srd_+3}], s{sx} offen offset:{off2*u}{sc}', 'pub')
        if sst is not None:
            a('v_pk_add_f32 v[40:41], v[16:17], v[18:19]\nv_pk_mul_f32 v[42:43], v[16:17], v[16:17]\nv_pk_fma_f32 v[42:43], v[18:19], v[18:19], v[42:43]')
            for k in range(4, 16, 2): a(f'v_pk_add_f32 v[40:41], v[40:41], v[{16+k}:{17+k}]\nv_pk_fma_f32 v[42:43], v[{16+k}:{17+k}], v[{16+k}:{17+k}], v[42:43]')
            a('v_add_f32 v40, v40, v41\nv_add_f32 v41, v42, v43\nv_permlane32_swap_b32 v40, v41\nv_add_f32 v40, v40, v41')
            a(f'buffer_store_dword v40, v6, s[8:11], s{sst} offen sc1', 'pub')
    def tile_addr(self, tb, blk, xi):
        self.a(f's_lshl_b32 s{sT0}, s{tb}, 15\ns_lshl_b32 s{sT1}, s{blk}, 11\ns_add_u32 s{sT0}, s{sT0}, s{sT1}\ns_add_u32 s{sT0}, s{sT0}, {X + xi*0x200000}')
        self.a(f'v_accvgpr_read_b32 v6, a{aST4}\ns_lshl_b32 s{sT2}, s{tb}, 12\ns_lshl_b32 s{sT1}, s{blk}, 8\ns_add_u32 s{sT2}, s{sT2}, s{sT1}\ns_add_u32 s{sT2}, s{sT2}, {ST + xi*0x40000}')
    def p2(self, l):
        a = self.a; xi = 2 * l
        self.red_addr(lambda q: a(f's_xor_b32 s{sT0}, s{sW}, {q}'))
        a(f's_lshl_b32 s{sT0}, s{sTB2}, 2\ns_add_u32 s{sT0}, s{sT0}, s{sW}\ns_lshl_b32 s{sT0}, s{sT0}, 7\ns_add_u32 s{sD2}, s{sT0}, {OC + l*0x8000}')
        a(f's_lshl_b32 s{sT3}, s{sTB2}, 15\ns_lshl_b32 s{sT1}, s{sW}, 13\ns_add_u32 s{sT3}, s{sT3}, s{sT1}\ns_add_u32 s{sT3}, s{sT3}, {OF + l*0x200000}')
        self.poll([sD2], 4)
        self.stamp(f'p2.flag{l}')
        for s in range(8): a.extend(self.ld(v(80 + 4 * s), sT3, 1024 * s, sT1))
        w4 = [self.ld(ag(4 * e), sW4, 1024 * e, sT1) for e in range(56)] if l == 0 else []
        nw4 = self.cfg.get('nw4p2', 20)
        pf = w4[56 - nw4:]; self.left = w4[:56 - nw4]
        self.tile_addr(sTB2, sBLK2, xi + 1)
        seq = [(s, q) for s in range(4) for q in range(4)] + [(s, q) for q in (1, 2, 3, 0) for s in range(4, 8)]
        ins = {}
        def put(n, x): ins.setdefault(n, []).extend(x if isinstance(x, list) else [x])
        for k in range(8): put(23 + k, self.red_write(1 + k // 4, k % 4, v(32 + 4 * k)))
        for k, g in enumerate(pf[:12]): put(2 * k + 3, g)
        for n, (s, q) in enumerate(seq):
            ac = v(16 + 16 * q, 16)
            a(f'{M32} {ac}, {v(XR + 16*s + 4*q)}, {v(80 + 4*s)}, {ac if (s or q == 0) else "0"}')
            a.extend(ins.get(n, []))
        a.extend(weave([[self.red_write(3, u, v(64 + 4 * u))] for u in range(4)], pf[12:16]))
        self.stamp(f'p2.mfma{l}')
        a.wait_tag('w3a')
        self.red_finish(16)
        self.tile_out(sT0, sT2, vL16, 8, 1024, ' sc1')
        a(f's_lshl_b32 s{sD3}, s{sW}, 13\ns_add_u32 s{sD3}, s{sD3}, s{sW3}')
        post = sum([self.dma4(sL16K, LB + 4096 * b, sD3, LB + 32768 * (b >> 1) + 4096 * (b & 1), f'w3b{b >> 1}') for b in range(4)], [])
        n3 = self.cfg.get('npre3', 0)
        for g in post[:n3]: a.extend(g)
        a(f's_lshl_b32 s{sT0}, s{sTB2}, 7\ns_add_u32 s{sT0}, s{sT0}, {X1C + l*0x2000}')
        a.wait_tag('pub')
        self.arrive(sT0)
        self.stamp(f'p2.arrive{l}')
        for g in pf[16:]: a.extend(g)
        npost = self.cfg.get('npost2', 8)
        for g in post[n3:npost]: a.extend(g)
        self.left34 = post[npost:]

    def hreg(self, e): return XR + 4 * e if e < 32 else (80 + 4 * (e - 32) if e < 44 else XR + 4 * (e - 44))
    def hslot(self, k):
        if k < 48: return k >> 1, k & 1
        return (24 + k - 48, 1) if k < 52 else (24 + k - 52, 0)
    def hl(self, k):
        idx, b = self.hslot(k); i, jj = idx >> 2, idx & 3
        return self.ld(v(self.hreg(k)), (sHL0, sHL1)[b], 1024 * (7 * jj + i), sT1)
    def p3(self, l):
        a = self.a; xi = 2 * l + 1; NX0 = 14; WB = 64; PD = 7
        a(f's_lshl_b32 s{sT0}, s{sTB}, 7\ns_add_u32 s{sD2}, s{sT0}, {X1C + l*0x2000}')
        a(f's_add_u32 s{sT3}, s{sXB}, {X + xi*0x200000}')
        a(f's_mul_i32 s{sT0}, s{sTB}, 112\ns_mul_i32 s{sT2}, s{sJ}, 7\ns_add_u32 s{sT0}, s{sT0}, s{sT2}\ns_lshl_b32 s{sT0}, s{sT0}, 10\ns_add_u32 s34, s{sT0}, {H + l*0x700000}\ns_add_u32 s35, s34, 4096')
        a(f's_lshl_b32 s{sT0}, s{sTB}, 2\ns_lshr_b32 s{sT1}, s{sJ}, 2\ns_add_u32 s{sT0}, s{sT0}, s{sT1}\ns_lshl_b32 s{sT0}, s{sT0}, 7\ns_add_u32 s{sHA}, s{sT0}, {HC + l*0x8000}')
        a(f's_and_b32 s{sT0}, s{sTB4}, -2\ns_lshl_b32 s{sT0}, s{sT0}, 2\ns_add_u32 s{sT0}, s{sT0}, s{sW}\ns_lshl_b32 s{sT0}, s{sT0}, 7\ns_add_u32 s{sHC}, s{sT0}, {HC + l*0x8000}')
        a(f's_add_u32 s{sHC2}, s{sHC}, 512')
        for (sb, tb) in ((sHL0, sTBA), (sHL1, sTBB)):
            a(f's_mul_i32 s{sb}, s{tb}, 112\ns_mul_i32 s{sT1}, s{sW}, 28\ns_add_u32 s{sb}, s{sb}, s{sT1}\ns_lshl_b32 s{sb}, s{sb}, 10\ns_add_u32 s{sb}, s{sb}, {H + l*0x700000}')
        a(f's_lshl_b32 s36, s{sTB4}, 15\ns_lshl_b32 s{sT1}, s{sBLK4}, 11\ns_add_u32 s36, s36, s{sT1}\ns_add_u32 s36, s36, {X + xi*0x200000}')
        a(f's_add_u32 s{sT2}, s{sW3}, s{sL4K}')
        acc = [16, 32, 48, 104, 16, 32, 104]
        order = [(i, s) for s in range(32) for i in range(3)] + [(i, s) for i in range(3, 7) for s in range(32)]
        def where(i, s):
            if i < 3: return 32768 * i + 1024 * s
            if i < 5: return LB + 16384 * (s >> 3) + 8192 * (i - 3) + 1024 * (s & 7)
            if i == 5: return 32768 * (s >> 4) + 1024 * (s & 15)
            return 65536 + 1024 * s if s < 16 else 1024 * s
        rd = lambda n: f'ds_read_b128 {v(WB + 4*(n%8))}, {self.lds(where(*order[n]))}'
        for n in range(PD): a(rd(n))
        self.poll([sD2], 16)
        self.stamp(f'p3.flag{l}')
        for s in range(NX0): a.extend(self.xload(xi, s))
        def epi(i):
            b = acc[i]; d = 96 + 4 * (i % 2); o = []
            for q in range(4):
                for k in (2 * q, 2 * q + 1):
                    o += [f'v_mul_f32 v{b+k}, v{b+k}, v5', f'v_mul_f32 v{b+k}, v{b+k}, v{b+8+k}']
                o.append(f'v_cvt_pk_bf16_f32 v{d+q}, v{b+2*q}, v{b+2*q+1}')
            if 'hs' not in self.cfg.get('drop', ''): o.append((f'buffer_store_dwordx4 {v(d)}, v{vL16}, s[8:11], s{34 if i < 4 else 35} offen offset:{1024*(i%4)} sc1', f'h{i}'))
            if 'ep' in self.cfg.get('drop', ''): o = o[-1:]
            return o
        c = self.cfg
        ins = {}
        def put(n, x): ins.setdefault(n, []).extend(x if isinstance(x, list) else [x])
        for s in range(NX0, 32): put(3 * (s - NX0), self.xload(xi, s))
        put(4, self.stat_loads(xi))
        rs = [f'v_accvgpr_read_b32 v9, a{aBP}'] + self.rstd() + ['ds_bpermute_b32 v5, v9, v96']
        for k, x in enumerate(rs): put(36 + k, x)
        put(36 + len(rs) + 8, 'v_mul_f32 v5, v5, v5')
        S5 = 5 * 32768
        dA = self.dma4(sL4K, 0, sT2, S5, 'w3c') + self.dma4(sL4K, 32768, sT2, S5 + 16384, 'w3c') + self.dma4(sL4K, 65536, sT2, S5 + 32768, 'w3c')
        dB = self.dma4(sL4K, 16384, sT2, S5 + 49152, 'w3d')
        res = [[f'buffer_load_dwordx4 {v(8)}, v{vL16}, s[8:11], s36 offen sc1'], [f'buffer_load_dwordx4 {v(12)}, v{vL16}, s[8:11], s36 offen offset:1024 sc1']]
        put(48, [('wait_tag', 'w3b0'), 's_barrier'])
        step = c.get('step3', 25) / 10.0
        pos = 54.0
        for g in self.left34 + dA + res: put(int(pos), g); pos += 2.0
        assert not self.left34 or 54 + 2 * len(self.left34) < 80
        put(101, [('wait_tag', 'w3b1'), 's_barrier'])
        for k, g in enumerate(dB): put(102 + k, g)
        pos = max(pos, 108.0)
        for g in self.left: put(int(pos), g); pos += step
        self.w4_end = pos
        put(151, [('wait_tag', 'w3d'), 's_barrier'])
        ep = epi(0) + epi(1) + epi(2)
        for k, x in enumerate(ep): put(98 + k // 3 + (4 if k >= 12 else 0), x)
        for i in range(3, 6):
            for k, x in enumerate(epi(i)): put(96 + 32 * (i - 2) + 2 + k // c.get('epr', 2), x)
        put(224, epi(6))
        for k, x in enumerate(self.unpack(8, lambda k: 16 + k)): put(192 + k, x)
        last = [2, 4, 5, 6]; first_k = [0, 24, 40, 48, 56]
        arr = [c.get('arrA', 170), c.get('arrB', 218), c.get('arrC', 246), c.get('arrD', 266)]
        chk = [c.get('chkA', 186), c.get('chkB', 232), c.get('chkC', 260), c.get('chkD', 280)]
        use = [c.get('useA', 202), c.get('useB', 248), c.get('useC', 276), c.get('useD', 296)]
        pace = [2, 2, 2, 1]
        seq = [self.hslot(k) for k in range(56)]
        for g in range(4):
            put(arr[g], [('wait_tag', f'h{last[g]}')] + self.arrive_l(sHA, 1 << (8 * g), (sAV, 63)[g & 1]))
            put(chk[g], self.peek([sHC, sHC2]))
            put(use[g], self.settle([sHC, sHC2], 4, g))
            for k in range(first_k[g], first_k[g + 1]):
                n = use[g] + pace[g] * (k - first_k[g])
                n = min(n, 224 + 2 * k - 1)
                assert n >= use[g] and (k >= 32 or n >= 192 + k)
                put(n, self.hl(k))
        put(223, ['s_barrier'])
        self.extra = []
        if l == 0:
            for b in range(6): self.extra += self.dma4(sL4K, 16384 * b, sW1, W1 + 16384 * b, 'w1')
            nin = c.get('w1in', 10)
            for k, g in enumerate(self.extra[:nin]): put(min(use[3] + 9 + 2 * k, 335), g)
            self.extra = self.extra[nin:]
        self.a = tmp = Asm(); self.red_addr(lambda q: tmp(f's_xor_b32 s{sT0}, s{sW}, {q}')); self.a = a
        for k, x in enumerate(tmp.items): put(224 + 92 + k // 2, [x])
        for k in range(8): put(min(224 + 106 + k, 335), self.red_write(2 + k // 4, k % 4, v(48 + 4 * k)))
        reg = {self.hslot(k): self.hreg(k) for k in range(56)}
        for n, (i, s) in enumerate(order):
            cc = v(acc[i], 16) if s else '0'
            a(f'{M32} {v(acc[i],16)}, {v(WB + 4*(n%8))}, {v(XR+4*s)}, {cc}')
            if n + PD < len(order): a(rd(n + PD))
            a.extend(ins.get(n, []))
            if n in (0, 50, 95, 127, 159, 191, 203): self.stamp(f'_p3.n{n}.{l}')
        self.stamp(f'p3.mfma{l}')
        n = 224
        for (idx, b) in seq:
            for t in range(2):
                q = t + 2 * b; ac = v(16 + 16 * q, 16)
                a(f'{M32} {ac}, {ag(8*idx + 4*t)}, {v(reg[(idx, b)])}, {ac if (idx or q == 0) else "0"}')
                a.extend(ins.get(n, []))
                if (n - 224) % 16 == 15: self.stamp(f'_p4.n{n}.{l}')
                n += 1

    def p4(self, l):
        a = self.a; extra = self.extra
        self.stamp(f'p4.mfma{l}')
        if l == 0: self.tile_addr(sTB4, sBLK4, 2)
        else: a(f'v_accvgpr_read_b32 v7, a{aOUT}\ns_lshl_b32 s{sT0}, s{sTB4}, 15\ns_lshl_b32 s{sT1}, s{sBLK4}, 6\ns_add_u32 s{sT0}, s{sT0}, s{sT1}')
        for u in range(4): a(self.red_write(1, u, v(32 + 4 * u)))
        self.red_finish(16)
        if l == 0:
            self.tile_out(sT0, sT2, vL16, 8, 1024, ' sc1')
            n4 = self.cfg.get('npre4', 0)
            for g in extra[:n4]: a.extend(g)
            a(f's_lshl_b32 s{sT0}, s{sTB4}, 7\ns_add_u32 s{sT0}, s{sT0}, {X2C}')
            a.wait_tag('pub')
            self.arrive(sT0)
            for g in extra[n4:]: a.extend(g)
        else:
            self.tile_out(sT0, None, 7, 12, 32, '')
        self.stamp(f'p4.end{l}')

    def finish(self):
        a = self.a
        if self.cfg.get('diag'):
            a('s_memrealtime s[58:59]\ns_waitcnt vmcnt(0) lgkmcnt(0)\nv_writelane_b32 v0, s78, 0\nv_writelane_b32 v0, s58, 1')
            for k, s in self.early: a(f'v_writelane_b32 v0, s{s}, {k + 2}')
            a(f's_lshl_b32 s{sT0}, s2, 2\ns_add_u32 s{sT0}, s{sT0}, s{sW}\ns_lshl_b32 s{sT0}, s{sT0}, 8\ns_add_u32 s{sT0}, s{sT0}, {DBG}')
            a(f'buffer_store_dword v0, v{vL4}, s[8:11], s{sT0} offen')
        a(f's_or_b32 s{sT0}, s2, s{sW}\ns_cmp_lg_u32 s{sT0}, 0\ns_cbranch_scc1 L_exit\ns_mov_b32 s{sT0}, {NW}\nv_mov_b32 v8, 0\nv_mov_b32 v9, s{sNO}\ns_mov_b64 exec, 1')
        a(f'buffer_store_dword v9, v8, s[8:11], s{sT0} offen sc1\nL_exit:\ns_endpgm\nL_code_end:')
        return a.finish()

def gen_main(name, cfg):
    g = Gen(name, cfg)
    g.init()
    stop = cfg.get('stop', 99); n = 0
    for l in range(2):
        for ph in (g.p1, g.p2, g.p3, g.p4):
            g.l = l
            if n < stop: ph(l)
            n += 1
    txt = g.finish()
    return txt, g
```
